```python
import torch

def _softmax(x, axis=-1):
    return torch.softmax(x, dim=axis)
def _gelu(x):
    return torch.nn.functional.gelu(x, approximate="tanh")
def _silu(x):
    return torch.nn.functional.silu(x)
def _sigmoid(x):
    return torch.sigmoid(x)
def _layernorm(x, axis=-1, eps=1e-5):
    m = x.mean(dim=axis, keepdim=True)
    v = x.var(dim=axis, keepdim=True, unbiased=False)
    return (x - m) / torch.sqrt(v + eps)
def _scatter_add(tgt, idx, src, axis=0):
    return tgt.clone().index_add_(axis, idx, src)
def _segment_sum(src, seg, n):
    out = torch.zeros((n,) + src.shape[1:], dtype=src.dtype)
    return out.index_add_(0, seg, src)
def _pad(x, pw):
    flat = tuple(v for pair in reversed(pw) for v in pair)
    return torch.nn.functional.pad(x, flat)

kernel_name = 'interleave_layers__ssm_conv_s4d__glu_gated_reglu__prompt'

def setup_inputs():

    _w = (lambda a: (lambda t: t.to(torch.bfloat16) if t.is_floating_point() else t)(torch.as_tensor(a)))
    def _A_setup():
        Bsz, L, D, N = 1, 2048, 512, 128
        return {
            "u": _w((lambda *s: torch.randn(*s, dtype=torch.bfloat16) * 0.05)(Bsz, L, D)),
            "log_A_real": _w((lambda *s: torch.randn(*s, dtype=torch.bfloat16) * 3.2)(D, N) * 0.5),
            "A_imag": _w((lambda *s: torch.randn(*s, dtype=torch.bfloat16) * 0.05)(D, N) * 3.14),
            "C_real": _w((lambda *s: torch.randn(*s, dtype=torch.bfloat16) * 0.05)(D, N) / N ** 0.5),
            "C_imag": _w((lambda *s: torch.randn(*s, dtype=torch.bfloat16) * 0.05)(D, N) / N ** 0.5),
            "log_dt": _w((lambda *s: torch.randn(*s, dtype=torch.bfloat16) * 0.05)(D) * 0.5 - 4.0),
            "D_skip": _w((lambda *s: torch.randn(*s, dtype=torch.bfloat16) * 0.05)(D)),
        }
    _A_in = _A_setup()

    def _B_setup():
        B, S, D, F = 1, 2048, 512, 1792
        return {
            "x": _w((lambda *s: torch.randn(*s, dtype=torch.bfloat16) * 0.05)(B, S, D)),
            "W_gate": _w((lambda *s: torch.randn(*s, dtype=torch.bfloat16) * 0.4)(D, F) * (2.0 / D) ** 0.5),
            "W_up": _w((lambda *s: torch.randn(*s, dtype=torch.bfloat16) * 0.4)(D, F) * (2.0 / D) ** 0.5),
            "W_down": _w((lambda *s: torch.randn(*s, dtype=torch.bfloat16) * 0.4)(F, D) * (1.0 / F) ** 0.5),
        }
    _B_in = _B_setup()

    return {
        "A_u": _A_in["u"],
        "A_log_A_real": _A_in["log_A_real"],
        "A_A_imag": _A_in["A_imag"],
        "A_C_real": _A_in["C_real"],
        "A_C_imag": _A_in["C_imag"],
        "A_log_dt": _A_in["log_dt"],
        "A_D_skip": _A_in["D_skip"],
        "B_x": _B_in["x"],
        "B_W_gate": _B_in["W_gate"],
        "B_W_up": _B_in["W_up"],
        "B_W_down": _B_in["W_down"],
    }

def reference(A_u, A_log_A_real, A_A_imag, A_C_real, A_C_imag, A_log_dt, A_D_skip, B_x, B_W_gate, B_W_up, B_W_down):
    def _A_ref(u, log_A_real, A_imag, C_real, C_imag, log_dt, D_skip):
        L = u.shape[1]
        dt = torch.exp(log_dt)
        A = -torch.exp(log_A_real) + 1j * A_imag
        C = (C_real + 1j * C_imag) * dt[:, None]
        pos = (lambda x, dt: x.to(dt))(torch.arange(L), log_dt.dtype)
        P = torch.exp((A * dt[:, None])[:, :, None] * pos[None, None, :])
        K = 2.0 * torch.einsum("dn,dnl->dl", C, P).real
        L2 = 2 * L
        u_t = (lambda x, *d: x.permute(*d))(u, 0, 2, 1)
        Kf = (lambda x, *a, **k: torch.fft.rfft(x.float(), *a, **k))(K, L2)
        Uf = (lambda x, *a, **k: torch.fft.rfft(x.float(), *a, **k))(u_t, L2)
        y = (lambda x, *a, **k: torch.fft.irfft(x, *a, **k).to(torch.bfloat16))(Uf * Kf[None, :, :], L2)[:, :, :L]
        y = (lambda x, *d: x.permute(*d))(y, 0, 2, 1)
        return y + u * D_skip[None, None, :]

    def _B_ref(x, W_gate, W_up, W_down):
        gate = torch.einsum("bsd,df->bsf", x, W_gate)
        up = torch.einsum("bsd,df->bsf", x, W_up)
        gate = gate * (lambda x, dt: x.to(dt))(gate > 0, gate.dtype)
        h = gate * up
        return torch.einsum("bsf,fd->bsd", h, W_down)

    x = A_u
    x = x + _A_ref(_layernorm(x, axis=-1), A_log_A_real, A_A_imag, A_C_real, A_C_imag, A_log_dt, A_D_skip)
    x = x + _B_ref(_layernorm(x, axis=-1), B_W_gate, B_W_up, B_W_down)
    x = x + _A_ref(_layernorm(x, axis=-1), A_log_A_real, A_A_imag, A_C_real, A_C_imag, A_log_dt, A_D_skip)
    x = x + _B_ref(_layernorm(x, axis=-1), B_W_gate, B_W_up, B_W_down)
    return x
```

```python
class Asm:
    def __init__(self):
        self.l = []
        self.uid = 0
    def __call__(self, s=""):
        for line in s.split("\n"):
            self.l.append(line)
    def label(self, base="L"):
        self.uid += 1
        return f"{base}_{self.uid}"
    def text(self):
        return "\n".join(self.l) + "\n"

def kernel_text(name, body):
    return f".globl {name}\n.p2align 8\n.type {name},@function\n{name}:\n{body}\ns_endpgm\n"

def kernel_desc(name, vgpr=256, sgpr=102, accum=None):
    if accum is None:
        accum = min(256, (vgpr + 3) // 4 * 4)
    return f""".amdhsa_kernel {name}
  .amdhsa_next_free_vgpr {vgpr}
  .amdhsa_next_free_sgpr {sgpr}
  .amdhsa_accum_offset {accum}
  .amdhsa_group_segment_fixed_size 0
  .amdhsa_kernarg_size 112
  .amdhsa_user_sgpr_count 2
  .amdhsa_user_sgpr_kernarg_segment_ptr 1
  .amdhsa_system_sgpr_workgroup_id_x 1
  .amdhsa_float_denorm_mode_32 3
.end_amdhsa_kernel
"""

def make_file(launches, kernels, header=""):
    s = header
    for (n, g, b, lds) in launches:
        s += f"; @launch kernel={n} grid=({g},1,1) block=({b},1,1) lds={lds}\n"
    s += '.amdgcn_target "amdgcn-amd-amdhsa--gfx950"\n.text\n'
    for k in kernels:
        s += kernel_text(k[0], k[1])
    s += '.section .rodata,"a"\n'
    for k in kernels:
        s += ".p2align 6\n" + kernel_desc(k[0], *k[2:])
    return s
```

```python
from asmlib import *
def k(form, dma, bar, reps=4, wd=False):
    a = Asm()
    a("""s_load_dwordx2 s[4:5], s[0:1], 104
s_load_dwordx2 s[6:7], s[0:1], 96
s_cmp_ge_u32 s2, 256
s_cbranch_scc1 Lb_end
s_waitcnt lgkmcnt(0)
s_mov_b32 s8, s4
s_mov_b32 s9, s5
s_mov_b32 s10, 0x10000000
s_mov_b32 s11, 0x20000
s_mov_b32 s12, s6
s_mov_b32 s13, s7
s_mov_b32 s14, 256
s_mov_b32 s15, 0x20000
v_lshrrev_b32 v2, 6, v0
s_nop 0
v_readfirstlane_b32 s16, v2
s_lshl_b32 s17, s16, 10
v_and_b32 v1, 63, v0
""")
    a("s_load_dwordx2 s[28:29], s[0:1], 64\ns_waitcnt lgkmcnt(0)\ns_mov_b32 s32, s28\ns_mov_b32 s33, s29\ns_mov_b32 s34, 1835008\ns_mov_b32 s35, 0x20000")
    a("v_lshlrev_b32 v3, 4, v0")
    for i in range(32):
        a(f"s_mov_b32 s18, {i*4096}")
        a(f"buffer_load_dwordx4 v[{128+4*i}:{131+4*i}], v3, s[32:35], s18 offen")
    a("""v_lshrrev_b32 v4, 2, v1
v_and_b32 v4, 3, v4      ; r
v_and_b32 v5, 3, v1      ; c
v_lshrrev_b32 v6, 4, v1  ; gamma
v_and_b32 v7, 1, v6      ; th
v_lshrrev_b32 v6, 1, v6  ; g""")
    if form == 32:
        a("v_lshlrev_b32 v8, 11, v6\nv_lshl_add_u32 v8, v4, 8, v8\nv_lshl_add_u32 v8, v7, 5, v8\nv_lshl_add_u32 v8, v5, 3, v8")
        for t in range(4):
            a(f"v_xor_b32 v9, {t}, v4\nv_lshl_add_u32 v{10+t}, v9, 6, v8\nv_add_u32 v{14+t}, 0xc000, v{10+t}")
    else:
        a("v_lshrrev_b32 v6, 4, v1\nv_lshlrev_b32 v8, 11, v6\nv_lshl_add_u32 v8, v4, 8, v8\nv_lshl_add_u32 v8, v5, 3, v8")
        a("v_and_b32 v7, 1, v6\nv_lshl_add_u32 v7, v4, 1, v7")
        for t in range(8):
            a(f"v_xor_b32 v9, {t}, v7\nv_lshl_add_u32 v{10+t}, v9, 5, v8\nv_add_u32 v{18+t}, 0xc000, v{10+t}")
    a("v_lshrrev_b32 v26, 4, v1\nv_lshlrev_b32 v26, 12, v26\nv_and_b32 v27, 15, v1\nv_lshl_add_u32 v26, v27, 4, v26")
    a("s_lshl_b32 s18, s16, 14\nv_add_u32 v26, s18, v26")
    a("s_and_b32 s18, s2, 7\ns_lshl_b32 s18, s18, 8\ns_add_u32 s36, s18, 0x1000000")
    for q in range(24):
        a(f"s_add_u32 m0, s17, {q*4096}\ns_mov_b32 s18, {q*4096}\nbuffer_load_dwordx4 v3, s[32:35], s18 offen lds")
    for r in range(64): a(f"v_mov_b32 v{64+r}, 0")
    a("s_waitcnt vmcnt(0)\ns_barrier\ns_mov_b32 s19, 0")
    a("s_memrealtime s[20:21]\ns_memtime s[22:23]\ns_waitcnt lgkmcnt(0)\nLrep:")
    def addr(regbase_lo, regbase_hi, t, off):
        if off >= 0xc000: return f"v{regbase_hi+t} offset:{off-0xc000}"
        return f"v{regbase_lo+t} offset:{off}"
    if form == 32:
        def reads(kap):
            buf = 32 + 16*(kap&1); L=[]
            slot = (kap % 24)*4096
            for t in range(4):
                for h in range(2):
                    L.append(f"ds_read_b64_tr_b16 v[{buf+4*t+2*h}:{buf+4*t+2*h+1}], " + addr(10,14,t,slot+h*1024))
            return L
        for x in reads(0): a(x)
        for kap in range(48):
            nxt = reads(kap+1)
            buf = 32 + 16*(kap&1); W = 128 + 4*(kap%32)
            if bar and kap % 4 == 3:
                if dma: a("s_waitcnt vmcnt(%d)" % (16 if not wd else 32))
                a("s_barrier")
            for t in range(4):
                a(nxt[2*t]); a(nxt[2*t+1])
                a(f"s_waitcnt lgkmcnt(8)")
                a(f"v_mfma_f32_32x32x16_bf16 v[{64+16*t}:{79+16*t}], v[{W}:{W+3}], v[{buf+4*t}:{buf+4*t+3}], v[{64+16*t}:{79+16*t}]")
                if dma and t == 1:
                    a(f"s_add_u32 m0, s17, {((kap+16)%24)*4096}")
                    a(f"s_add_u32 s18, s36, {(kap%32)*65536}")
                    a(f"buffer_load_dwordx4 v26, s[8:11], s18 offen sc1 lds")
                if wd and t == 3:
                    a(f"buffer_load_dwordx4 a[{4*(kap%32)}:{4*(kap%32)+3}], v3, s[32:35], s18 offen")
        nm = 48*4
    else:
        def reads(kap):
            buf = 32 + 16*(kap&1); L=[]
            ks = kap//2; slot = (ks % 12)*8192
            for t in range(4):
                for h in range(2):
                    L.append(f"ds_read_b64_tr_b16 v[{buf+4*t+2*h}:{buf+4*t+2*h+1}], " + addr(10,18,t+4*(kap&1),slot+h*1024))
            return L
        for x in reads(0): a(x)
        for kap in range(48):
            nxt = reads(kap+1)
            buf = 32 + 16*(kap&1); W = 128 + 8*((kap//2)%16)
            if bar and kap % 4 == 3:
                if dma: a("s_waitcnt vmcnt(16)")
                a("s_barrier")
            for t in range(4):
                tt = t + 4*(kap&1)
                a(nxt[2*t])
                a(f"s_waitcnt lgkmcnt(7)")
                a(f"v_mfma_f32_16x16x32_bf16 v[{64+8*tt}:{67+8*tt}], v[{W}:{W+3}], v[{buf+4*t}:{buf+4*t+3}], v[{64+8*tt}:{67+8*tt}]")
                a(nxt[2*t+1])
                a(f"v_mfma_f32_16x16x32_bf16 v[{68+8*tt}:{71+8*tt}], v[{W+4}:{W+7}], v[{buf+4*t}:{buf+4*t+3}], v[{68+8*tt}:{71+8*tt}]")
                if dma and t == 1:
                    a(f"s_add_u32 m0, s17, {((kap+16)%24)*4096}")
                    a(f"s_add_u32 s18, s36, {(kap%32)*65536}")
                    a(f"buffer_load_dwordx4 v26, s[8:11], s18 offen sc1 lds")
        nm = 48*4
    a(f"""s_waitcnt lgkmcnt(0)
s_add_u32 s19, s19, 1
s_cmp_lt_u32 s19, {reps}
s_cbranch_scc1 Lrep
s_memrealtime s[24:25]
s_memtime s[26:27]
s_waitcnt lgkmcnt(0)
s_sub_u32 s24, s24, s20
s_sub_u32 s26, s26, s22
s_waitcnt vmcnt(0)
s_cmp_lg_u32 s2, 0
s_cbranch_scc1 Lb_end
v_mov_b32 v4, s24
v_mov_b32 v5, s26
v_mov_b32 v6, {nm*reps}
v_mov_b32 v8, 0
s_mov_b64 exec, 1
buffer_store_dwordx3 v[4:6], v8, s[12:15], 0 offen
Lb_end:""")
    return a.text()
for form in (32,16):
    for dma,bar in ((0,0),(0,1),(1,1)):
        open(f"g1_{form}_{dma}{bar}.s","w").write(make_file([("b_kernel",256,256,131072)], [("b_kernel", k(form,dma,bar), 512, 64, 256)]))
open(f"g1_32_wd.s","w").write(make_file([("b_kernel",256,256,131072)], [("b_kernel", k(32,1,1,wd=True), 512, 64, 256)]))
```

```python
from asmlib import *
import gen_g1mb, glob, os
for f in glob.glob("g1_*"): os.remove(f)
for form in (32,16):
    for nwg in (64,128,224,256):
        for reps in (1,4):
            t = gen_g1mb.k(form,0,1,reps=reps).replace("s_cmp_ge_u32 s2, 256", f"s_cmp_ge_u32 s2, {nwg}")
            open(f"g1_{form}_n{nwg}_r{reps}.s","w").write(make_file([("b_kernel",256,256,131072)], [("b_kernel", t, 512, 64, 256)]))
```

```python
import re

REG = re.compile(r'^(-)?(abs\()?([vas])(\d+)\)?$')
RNG = re.compile(r'^(-)?([vas])\[(\d+):(\d+)\]$')

def regs_of(tok):
    tok = tok.strip()
    m = REG.match(tok)
    if m: return [(m.group(3), int(m.group(4)))]
    m = RNG.match(tok)
    if m: return [(m.group(2), i) for i in range(int(m.group(3)), int(m.group(4)) + 1)]
    if tok == 'vcc': return [('s', 'vcc_lo'), ('s', 'vcc_hi')]
    if tok in ('vcc_lo', 'vcc_hi'): return [('s', tok)]
    if tok == 'exec': return [('s', 'exec_lo'), ('s', 'exec_hi')]
    if tok in ('exec_lo', 'exec_hi'): return [('s', tok)]
    if tok == 'm0': return [('s', 'm0')]
    return []

TRANS = ('v_exp_f32', 'v_log_f32', 'v_rcp_f32', 'v_rsq_f32', 'v_sqrt_f32', 'v_sin_f32', 'v_cos_f32')

class Ins:
    def __init__(self, text):
        self.text = text
        t = text.split(';')[0].strip()
        self.label = t.endswith(':')
        self.op = ''
        self.dst = []; self.src = []
        self.kind = 'other'
        if not t or self.label or t.startswith('.'):
            self.kind = 'none'; return
        parts = t.split(None, 1)
        self.op = op = parts[0]
        rest = parts[1] if len(parts) > 1 else ''
        ops = [o.strip() for o in rest.split(',')] if rest else []
        ops2 = []
        for o in ops:
            ops2.append(o.split()[0] if o.split() else o)
        mods = rest
        R = [regs_of(o) for o in ops2]
        flat = lambda L: [x for l in L for x in l]
        if op.startswith('v_mfma'):
            self.kind = 'mfma'; self.dst = R[0]; self.srcA = R[1] + R[2]; self.srcC = R[3]; self.src = flat(R[1:])
            self.passes = 8 if '32x32' in op else 4
        elif op.startswith('v_'):
            self.kind = 'valu'
            if op.startswith('v_permlane'):
                self.dst = R[0] + R[1]; self.src = R[0] + R[1]
            elif op.startswith('v_cmp'):
                self.dst = R[0]; self.src = flat(R[1:])
            elif op.startswith(('v_add_co', 'v_sub_co', 'v_addc_co')):
                self.dst = R[0] + R[1]; self.src = flat(R[2:])
            else:
                self.dst = R[0]; self.src = flat(R[1:])
                if op.startswith(('v_fmac', 'v_dot2c', 'v_writelane')) or '_dpp' in op: self.src = self.src + R[0]
                if op.startswith('v_cndmask') and len(ops) == 3: self.src += regs_of('vcc')
            self.trans = op.split('_e')[0] in TRANS or op in TRANS
            self.dpp = 'dpp' in op or 'row_' in mods or 'quad_perm' in mods
            self.dot = op.startswith('v_dot')
        elif op.startswith('ds_'):
            self.kind = 'ds'
            if op.startswith(('ds_read', 'ds_bpermute', 'ds_permute', 'ds_swizzle')):
                self.dst = R[0]; self.src = flat(R[1:])
            else:
                self.src = flat(R)
        elif op.startswith(('buffer_', 'global_')):
            self.kind = 'vmem'
            islds = re.search(r'\blds\b', mods) is not None or '_lds_' in op
            self.lds = islds
            if ('load' in op) and not islds:
                self.dst = R[0]; self.src = flat(R[1:])
            else:
                self.src = flat(R)
                if 'atomic' in op and ' sc0' in mods: self.dst = R[0]
            self.wide_store = ('store' in op) and ('x3' in op or 'x4' in op)
            self.data = R[0] if 'store' in op and op.startswith('buffer_') else (R[1] if 'store' in op else [])
            if islds: self.src = self.src + [('s', 'm0')]
        elif op.startswith('s_'):
            self.kind = 'salu'
            if op.startswith(('s_cmp', 's_cbranch', 's_branch', 's_waitcnt', 's_barrier', 's_nop', 's_sleep', 's_endpgm', 's_setprio')):
                self.src = flat(R)
            else:
                self.dst = R[0] if R else []; self.src = flat(R[1:])
                if 'saveexec' in op: self.dst = self.dst + regs_of('exec')
        self.states = 1
        if op == 's_nop': self.states = int(ops2[0], 0) + 1

def need(p, c):
    n = 0
    pd = set(p.dst); cs = set(c.src); cd = set(c.dst)
    vreg = lambda S: {r for r in S if r[0] in 'va'}
    sreg = lambda S: {r for r in S if r[0] == 's'}
    if p.kind == 'valu':
        if c.kind == 'mfma' and vreg(pd) & cs: n = max(n, 2)
        if c.kind == 'mfma' and any(r[1] in ('exec_lo', 'exec_hi') for r in pd): n = max(n, 4)
        if c.kind == 'valu':
            if c.op.startswith('v_permlane') and vreg(pd) & cs: n = max(n, 2)
            if c.dpp and vreg(pd) & cs: n = max(n, 2)
            if c.op.startswith(('v_readlane', 'v_readfirstlane')) and vreg(pd) & cs: n = max(n, 1)
            if sreg(pd) & cs: n = max(n, 4 if c.op.startswith(('v_readlane', 'v_writelane')) else 2)
            if p.trans and vreg(pd) & cs: n = max(n, 1)
            if p.dot and vreg(pd) & (cs | cd) and not (c.op == p.op and not (vreg(pd) & set(c.src[:2]))): n = max(n, 3)
        if p.dot and c.kind in ('ds', 'vmem', 'mfma') and vreg(pd) & cs: n = max(n, 3)
        if c.kind == 'vmem' and sreg(pd) & cs: n = max(n, 5)
        if c.kind == 'salu' and sreg(pd) & cs: n = max(n, 2)
    if p.kind == 'mfma':
        big = 12 if p.passes == 8 else 8
        if c.kind == 'mfma':
            if pd & set(c.srcA): n = max(n, big)
            if pd & set(c.srcC):
                if not (p.dst == c.srcC and p.op == c.op): n = max(n, 10 if p.passes == 8 else 6)
            if pd & cd and not (p.dst == c.dst): n = max(n, big)
        elif c.kind in ('valu', 'ds', 'vmem'):
            if pd & (cs | cd): n = max(n, big)
            if c.kind == 'valu' and set(p.srcC) & cd: n = max(n, 7 if p.passes == 8 else 3)
    if p.kind == 'vmem' and getattr(p, 'wide_store', False):
        if c.kind in ('valu', 'mfma', 'ds', 'vmem') and set(p.data) & cd: n = max(n, 2)
    if p.kind == 'ds' and p.op in ('ds_write_b128', 'ds_write_b96'):
        if c.kind == 'valu' and set(p.src) & cd: n = max(n, 0)
    if p.kind == 'salu':
        if ('s', 'm0') in pd and c.kind == 'vmem' and getattr(c, 'lds', False): n = max(n, 1)
    return n

def fix_hazards(lines):
    out = []; hist = []
    added = 0
    for text in lines:
        c = Ins(text)
        if c.kind != 'none':
            dist = 0; req = 0
            for p in reversed(hist):
                k = need(p, c)
                if k > dist: req = max(req, k - dist)
                dist += p.states
                if dist >= 20: break
            while req > 0:
                n = min(req, 16)
                nop = Ins(f"s_nop {n-1}")
                out.append(nop.text); hist.append(nop); req -= n; added += 1
            hist.append(c)
            if len(hist) > 40: hist = hist[-40:]
        out.append(text)
    return out, added

class E:
    def __init__(self):
        self.l = []; self.uid = 0
        self.vm = []
        self.vm_done = -1
        self.vm_done_c = -1
        self.incond = False
        self.lg = 0; self.lg_done = -1
    def __call__(self, s):
        for line in s.split('\n'):
            t = line.strip()
            if t: self.l.append(t)
    def lab(self, base):
        self.uid += 1; return f"L{base}_{self.uid}"
    def vmem(self, s):
        self(s); self.vm.append(self.incond); return len(self.vm) - 1
    def wait_vm(self, tok):
        if tok is None: return
        if isinstance(tok, (list, tuple)):
            tok = max(tok)
        n_all = len(self.vm) - 1 - tok
        n_unc = sum(1 for c in self.vm[tok + 1:] if not c)
        if self.incond:
            if tok <= max(self.vm_done, self.vm_done_c): return
            self(f"s_waitcnt vmcnt({min(n_all, 63)})")
            if n_all <= 63: self.vm_done_c = max(self.vm_done_c, tok)
            else: raise Exception("vmcnt overflow")
            return
        assert not self.vm[tok], "waiting on cond op in common code"
        if tok <= self.vm_done: return
        assert n_all <= 63, "vmcnt overflow"
        if n_all == n_unc or tok <= self.vm_done_c:
            if n_all != n_unc:
                L = self.lab('w'); self(f"s_cmp_eq_u32 {self.sW}, 0\ns_cbranch_scc1 {L}\ns_waitcnt vmcnt({n_unc})\n{L}:")
            else:
                self(f"s_waitcnt vmcnt({n_unc})")
        else:
            L = self.lab('w')
            self(f"s_waitcnt vmcnt({n_all})\ns_cmp_eq_u32 {self.sW}, 0\ns_cbranch_scc1 {L}\ns_waitcnt vmcnt({n_unc})\n{L}:")
        self.vm_done = tok
    def wait_vm_all(self):
        self("s_waitcnt vmcnt(0)")
        if self.incond: self.vm_done_c = len(self.vm) - 1
        else: self.vm_done = len(self.vm) - 1; self.vm_done_c = len(self.vm) - 1
    def ds(self, s):
        self(s); self.lg += 1; return self.lg - 1
    def wait_lg(self, tok):
        if isinstance(tok, (list, tuple)): tok = max(tok)
        if tok <= self.lg_done: return
        n = self.lg - 1 - tok
        if n > 15:
            n = 15
            self(f"s_waitcnt lgkmcnt({n})"); self.lg_done = self.lg - 1 - n
            return
        self(f"s_waitcnt lgkmcnt({n})"); self.lg_done = tok
    def wait_lg_all(self):
        self("s_waitcnt lgkmcnt(0)"); self.lg_done = self.lg - 1
    def begin_w0(self):
        assert not self.incond
        self.incond = True; self._cl = self.lab('c')
        self(f"s_cmp_lg_u32 {self.sW}, 0\ns_cbranch_scc1 {self._cl}")
        self._lgsave = None
    def end_w0(self):
        self(f"{self._cl}:"); self.incond = False
    def text(self):
        out, added = fix_hazards(self.l)
        self.nops = added
        return "\n".join(out) + "\n"

def sched(lines, lat=3):
    ins = [Ins(x) for x in lines]
    n = len(ins)
    preds = [[] for _ in range(n)]; succs = [[] for _ in range(n)]
    lastw = {}; readers = {}
    for i, c in enumerate(ins):
        src = list(c.src); dst = list(c.dst)
        if c.kind == 'salu':
            dst.append(('s', 'scc'))
            if c.op.startswith(('s_cselect', 's_addc', 's_cbranch')): src.append(('s', 'scc'))
        for r in src:
            if r in lastw: preds[i].append((lastw[r], lat + (1 if getattr(ins[lastw[r]], 'trans', False) else 0)))
        for r in dst:
            if r in lastw: preds[i].append((lastw[r], 1))
            for j in readers.get(r, []):
                if j != i: preds[i].append((j, 1))
        for r in src: readers.setdefault(r, []).append(i)
        for r in dst: lastw[r] = i; readers[r] = []
    for i in range(n):
        for j, w in preds[i]: succs[j].append((i, w))
    prio = [0]*n
    for i in reversed(range(n)):
        prio[i] = max([prio[j] + w for j, w in succs[i]], default=0)
    done = {}; out = []; t = 0
    left = set(range(n))
    while left:
        cand = [i for i in left if all(j in done for j, w in preds[i])]
        def rdy(i): return max([done[j] + w for j, w in preds[i]], default=0)
        ok = [i for i in cand if rdy(i) <= t]
        if ok: i = max(ok, key=lambda i: (prio[i], -i))
        else: i = min(cand, key=lambda i: (rdy(i), -prio[i]))
        done[i] = t; out.append(lines[i]); left.remove(i); t += 1
    return out
```

```python
import sys
from emit import E, sched
from asmlib import kernel_desc

KN = "interleave_layers__ssm_conv_s4d__glu_gated_reglu__prompt_kernel"
CNT = 0x0000000
LG  = 0x0010000
STS = [0x0020000, 0x0018000]
ST = None
STAMP = 0x0040000
XT  = [0x0200000, 0x0400000, 0x0600000, 0x0800000]
W1F = 0x0A00000
WDF = 0x0E00000
HB  = [0x1000000, 0x1800000]
OOB = 0x7F000000
def SET_C(l, h): return 2*l + h
def SET_X(h): return 4 + h
GRP = CNT + 384*128
KC   = 0
SCR  = 33280
RING = SCR + 29696
LDS_BYTES = RING + 98304
UB = SCR; XB = SCR + 15360
EXR = RING + 22*4096
G2EX = SCR; G2T = SCR + 24576
KG = RING; TB = RING + 93200
PT = SCR; PS = SCR + 8192
NQ = 24
sWS = "s[8:11]"; sOUT = "s[12:15]"; sDBG = "s[16:19]"
sW = "s28"; sRING = "s29"; sHW = "s30"; sCA = "s31"
sCONV = "s32"; sG1X = "s33"; sG1H = "s34"; sG2H = "s35"; sG2X = "s36"; sG2T = "s37"; sG2S = "s38"; sLG = "s39"
sCG = "s40"; sJ = "s41"; sOUTO = "s42"; sW1 = "s43"; sWD = "s44"; sSTQ = "s45"
sEW = "s84"; sER = "s85"; sGW = "s86"; sGR = 87; sCST = "s90"; sWDX = "s91"
sSPIN = "s80"
T0, T1, T2, T3 = "s60", "s61", "s62", "s63"
TD = "s59"; TBG = "s58"
vL = "v1"; vPOLL = "v2"; vARR = "v3"; vPOLLG = "v4"; vD = "v5"
vCA = "v6"; vCB = "v7"; vNU = "v8"; vT16 = "v9"; vT4 = "v10"; vCE = "v11"; vCO = "v12"
vXR = 13; vXD = "v21"; vL16 = "v22"; vLGA = "v23"; vHR = 24
vRES = "v26"; vSTA = "v27"; vTW = "v28"; vTS = "v29"; vWDL = "v30"; vEXA = "v33"
vOW = vTW; vOR = vSTA; vOS = vTS
vP = "v34"; vONE = "v35"; vZA = "v36"; vZB = "v37"; vSTMP = "v39"
vCS = 156
def W1R(k): return f"v[{160+4*k}:{163+4*k}]" if k < 24 else f"a[{224+4*(k-24)}:{227+4*(k-24)}]"
def WDR(b, x): return f"a[{8*b+4*x}:{8*b+4*x+3}]"

class G(E):
    def __init__(self, opt):
        super().__init__(); self.sW = sW; self.opt = opt; self.nstamp = 0; self.stampnames = []
        self.bgq = []; self.st = {}; self.fq = []
    def stamp(self, name):
        if not self.opt.get('stamps'): return
        if self.opt.get('gst') and self.nstamp_skip(name): return
        if self.opt.get('stamps') == 2 and name != 'end': return
        assert self.nstamp < 63
        self(f"s_memrealtime s[82:83]\ns_waitcnt lgkmcnt(0)\nv_writelane_b32 {vSTMP}, s82, {self.nstamp}")
        self.lg_done = self.lg - 1
        self.nstamp += 1; self.stampnames.append(name)
    def nstamp_skip(self, name):
        return name in ('karg','start','ldx0','ldw','prepst','arrP','kgH','kgT','kgen') or name.startswith(('c0','f0','g10','g20'))
    def bg(self, n=1):
        for _ in range(n):
            if self.bgq: self.bgq.pop(0)()
    def fill(self, n):
        while n > 0 and self.fq:
            f = self.fq[0]
            if f[1] > 0: f[1] -= 1; return
            try: next(f[0]); n -= 1
            except StopIteration: self.fq.pop(0)
    def drain(self, key=None):
        while self.fq and (key is None or any(f[2] == key for f in self.fq)):
            for _ in self.fq[0][0]: pass
            self.fq.pop(0)
    def block(self, text, lat=3):
        lines = [x.strip() for x in text.split('\n') if x.strip()] if isinstance(text, str) else text
        for x in sched(lines, lat):
            (self.ds if x.startswith('ds_') else self)(x)
    def barrier(self): self("s_barrier")
    def srd(self, base, lo, nbytes):
        self(f"s_mov_b32 s{base}, s{lo}\ns_mov_b32 s{base+1}, s{lo+1}\ns_mov_b32 s{base+2}, {nbytes}\ns_mov_b32 s{base+3}, 0x20000")
    def arrive(self, st):
        self.begin_w0()
        self(f"s_mov_b32 {T3}, {CNT + st*8192}\ns_mov_b64 exec, 0xff")
        self.vmem(f"buffer_atomic_add {vONE}, {vARR}, {sWS}, {T3} offen sc1")
        self("s_mov_b64 exec, -1"); self.end_w0()
    def poll_issue(self, off, va, srd=sWS):
        return self.vmem(f"buffer_load_dword {vP}, {va}, {srd}, {off} offen sc1")
    def poll_check(self, tok, off, va, target, code, srd=sWS):
        self.wait_vm(tok)
        L = self.lab('sp'); Ld = self.lab('sd')
        self(f"""v_cmp_gt_u32 vcc, {target}, {vP}
        s_cbranch_vccz {Ld}
        s_mov_b32 {sSPIN}, 0
        {L}:
        buffer_load_dword {vP}, {va}, {srd}, {off} offen sc1
        s_waitcnt vmcnt(0)
        v_cmp_gt_u32 vcc, {target}, {vP}
        s_cbranch_vccz {Ld}
        s_add_u32 {sSPIN}, {sSPIN}, 1
        s_cmp_lt_u32 {sSPIN}, 0x8000
        s_cbranch_scc1 {L}
        v_mov_b32 {vP}, {code}
        v_mov_b32 v38, 4
        buffer_store_dword {vP}, v38, {sDBG}, 0 offen
        s_waitcnt vmcnt(0)
        {Ld}:""")
    def w0_issue(self, key, st):
        self.begin_w0(); self(f"s_mov_b32 s64, {CNT + st*8192}"); self.st[key] = self.poll_issue("s64", vPOLL); self.end_w0()
    def w0_check(self, key, code):
        self.begin_w0(); self.poll_check(self.st[key], "s64", vPOLL, 32, code); self.end_w0()
    def w0_issue_g(self, key, l, h):
        self.begin_w0(); self(f"s_add_u32 s65, {sCG}, {(2*l+h)*4096}"); self.st[key] = self.poll_issue("s65", vPOLLG); self.end_w0()
    def w0_check_g(self, key, code):
        self.begin_w0(); self.poll_check(self.st[key], "s65", vPOLLG, 28, code); self.end_w0()

def cmul(d, x, y):
    return [f"v_pk_mul_f32 v[{d}:{d+1}], v[{x}:{x+1}], v[{y}:{y+1}] op_sel:[0,0] op_sel_hi:[0,1]",
            f"v_pk_fma_f32 v[{d}:{d+1}], v[{x}:{x+1}], v[{y}:{y+1}], v[{d}:{d+1}] op_sel:[1,1,0] op_sel_hi:[1,0,1] neg_lo:[0,1,0]"]
def rho(t):
    if t < 8: return t
    m = t.bit_length() - 1
    return 8*(m-2) + ((t >> (m-3)) & 7)

def prologue(g):
    if g.opt.get('stamps'): g(f'v_mov_b32 {vSTMP}, 0\ns_memrealtime s[82:83]\ns_memtime s[92:93]\ns_waitcnt lgkmcnt(0)\nv_writelane_b32 {vSTMP}, s82, 63')
    g(f"""s_cmp_ge_u32 s2, 256
    s_cbranch_scc1 Lend
    s_load_dwordx16 s[44:59], s[0:1], 0
    s_load_dwordx8 s[64:71], s[0:1], 64
    s_load_dwordx4 s[72:75], s[0:1], 96
    v_and_b32 {vL}, 63, v0
    v_lshrrev_b32 v40, 6, v0
    v_readfirstlane_b32 {sW}, v40""")
    g.block(f"""s_and_b32 s76, s2, 7
    s_lshr_b32 {sJ}, s2, 3
    s_lshr_b32 s77, {sJ}, 3
    s_lshl_b32 s78, s76, 2
    s_add_u32 s77, s77, s78
    s_and_b32 s78, {sJ}, 7
    v_and_b32 v40, 31, {vL}
    v_lshrrev_b32 v41, 5, {vL}
    v_lshlrev_b32 v42, 10, v40
    v_lshl_add_u32 v42, v41, 4, v42
    v_lshlrev_b32 v43, 1, v0
    v_lshrrev_b32 v44, 7, v0
    v_lshlrev_b32 v44, 1, v44
    v_lshlrev_b32 {vL16}, 4, {vL}
    v_bfe_u32 v47, {vL}, 3, 1
    v_bfe_u32 v48, {vL}, 1, 2
    v_lshl_add_u32 v47, v47, 2, v48
    v_mul_u32_u24 v45, 3584, v47
    v_lshrrev_b32 v49, 4, {vL}
    v_and_b32 v50, 1, {vL}
    v_lshl_add_u32 v49, v49, 1, v50
    v_lshl_add_u32 v45, v49, 4, v45
    v_bfe_u32 v51, {vL}, 2, 2
    v_lshl_add_u32 v51, v41, 2, v51
    v_lshlrev_b32 v46, 10, v51
    v_bfe_u32 v66, {vL}, 4, 1
    v_and_b32 v67, 3, {vL}
    v_lshl_add_u32 v66, v66, 2, v67
    v_lshl_add_u32 v46, v66, 4, v46
    s_lshl_b32 s79, s2, 2
    s_add_u32 s79, s79, {sW}
    s_lshl_b32 {T0}, s77, 15
    s_lshl_b32 {T1}, s78, 7
    s_add_u32 {sOUTO}, {T0}, {T1}
    s_lshl_b32 {T1}, {sW}, 5
    s_add_u32 {T0}, {sOUTO}, {T1}
    s_add_u32 {T1}, {T0}, 0x100000
    s_lshl_b32 {T2}, s2, 9
    s_lshl_b32 {T3}, s2, 2
    s_lshl_b32 s81, s79, 11""", 2)
    g("s_waitcnt lgkmcnt(0)")
    g.stamp('karg')
    tk = {}
    g.srd(4, 44, 2097152)
    for h in range(2): g.vmem(f"buffer_load_dwordx4 v[{52+4*h}:{55+4*h}], v42, s[4:7], {(T0, T1)[h]} offen")
    for h in range(2): tk['x0'] = g.vmem(f"buffer_load_dwordx4 v[{112+4*h}:{115+4*h}], {vL16}, s[4:7], s81 offen offset:{h*1024}")
    for i, (lo, r) in enumerate(((46, 60), (48, 61), (50, 62), (52, 63))):
        b = (20, 24, 20, 24)[i]
        g.srd(b, lo, 131072)
        g.vmem(f"buffer_load_ushort v{r}, v43, s[{b}:{b+3}], {T2} offen")
    g.srd(20, 54, 1024); g.vmem(f"buffer_load_ushort v64, v44, s[20:23], {T3} offen")
    g.srd(24, 56, 1024); tk['p'] = g.vmem(f"buffer_load_ushort {vD}, v44, s[24:27], {T3} offen")
    g.srd(4, 64, 1835008); g.srd(20, 66, 1835008); g.srd(24, 68, 1835008)
    g(f"""s_lshr_b32 {T0}, s79, 5
    s_and_b32 {T1}, s79, 31
    s_mul_i32 {T2}, {T1}, {16*3584}
    s_lshl_b32 {T3}, {T0}, 7
    s_add_u32 {T2}, {T2}, {T3}
    s_lshl_b32 {T0}, {T0}, 17
    s_lshl_b32 {T1}, {T1}, 10
    s_add_u32 {T0}, {T0}, {T1}
    s_add_u32 {T0}, {T0}, {W1F}
    s_cmp_lt_u32 s79, 896
    s_cselect_b32 s46, {T2}, {OOB}
    s_cselect_b32 s47, {T0}, {OOB}
    s_lshl_b32 s50, {sW}, 13""")
    for i in range(4):
        g(f"s_add_u32 m0, s50, {KC + i*1024}\ns_add_u32 {T0}, s46, {(i&1)*8*3584}")
        g.vmem(f"buffer_load_dwordx4 v45, {('s[4:7]','s[20:23]')[i>>1]}, {T0} offen lds")
    g(f"""s_sub_u32 {T0}, s79, 128
    s_mul_hi_u32 {T1}, {T0}, {(2**32 + 111)//112}
    s_mul_i32 {T2}, {T1}, 112
    s_sub_u32 {T2}, {T0}, {T2}
    s_lshl_b32 {T2}, {T2}, 14
    s_lshl_b32 {T1}, {T1}, 7
    s_add_u32 {T2}, {T2}, {T1}
    s_lshl_b32 {T0}, {T0}, 11
    s_add_u32 {T0}, {T0}, {WDF}
    s_cmp_ge_u32 s79, 128
    s_cselect_b32 s48, {T2}, {OOB}
    s_cselect_b32 s49, {T0}, {OOB}""")
    for i in range(2):
        g(f"s_add_u32 m0, s50, {KC + (4+i)*1024}\ns_add_u32 {T0}, s48, {i*8192}")
        tk['w'] = g.vmem(f"buffer_load_dwordx4 v46, s[24:27], {T0} offen lds")
    g.srd(8, 74, 0x10000000); g.srd(12, 70, 2097152); g.srd(16, 72, 256)
    g(f"""v_mov_b32 v68, 0
    v_mov_b32 v69, 0
    v_mov_b32 v70, 0
    v_mov_b32 v71, 0
    s_lshl_b32 {T0}, s79, 7
    s_mov_b64 exec, 0xff""")
    g.vmem(f"buffer_store_dwordx4 v[68:71], {vL16}, {sWS}, {T0} offen sc1")
    g("s_mov_b64 exec, -1")
    g(f"""s_and_b32 s52, s76, 1
    s_lshl_b32 s52, s52, 2
    s_and_b32 {T0}, {sJ}, 3
    s_add_u32 s52, s52, {T0}
    s_lshr_b32 s54, s76, 1
    s_mul_i32 s53, s54, 7
    s_lshr_b32 {T0}, {sJ}, 2
    s_add_u32 s53, s53, {T0}
    s_lshr_b32 s55, {sW}, 1
    s_lshl_b32 {sRING}, {sW}, 10
    s_add_u32 {sRING}, {sRING}, {RING}
    s_and_b32 {sHW}, {sW}, 1
    s_lshl_b32 {sCONV}, s2, 13
    s_lshl_b32 {T0}, s55, 12
    s_lshl_b32 {T1}, {sHW}, 10
    s_add_u32 {T0}, {T0}, {T1}
    s_add_u32 {sCST}, {T0}, {sCONV}
    s_lshl_b32 {sG1X}, s52, 8
    s_lshl_b32 {T0}, {sW}, 14
    s_add_u32 {sG1X}, {sG1X}, {T0}
    s_mul_i32 {sG1H}, s52, 448
    s_lshl_b32 {T0}, s53, 2
    s_add_u32 {T0}, {T0}, {sW}
    s_add_u32 {sG1H}, {sG1H}, {T0}
    s_lshl_b32 {sG1H}, {sG1H}, 10
    s_lshl_b32 {sW1}, {T0}, 15
    s_add_u32 {sW1}, {sW1}, {W1F}
    s_mul_i32 {sG2H}, s77, 112
    s_mul_i32 {T0}, {sW}, 28
    s_add_u32 {sG2H}, {sG2H}, {T0}
    s_lshl_b32 {sG2H}, {sG2H}, 10
    s_mul_i32 s51, s78, 112
    s_add_u32 s51, s51, {T0}
    s_lshl_b32 s51, s51, 11
    s_add_u32 s51, s51, {WDF}
    s_lshl_b32 {T0}, s55, 10
    s_add_u32 {sWD}, s51, {T0}
    s_xor_b32 {T0}, {T0}, 1024
    s_add_u32 {sWDX}, s51, {T0}
    s_lshl_b32 {sG2T}, s78, 18
    s_lshl_b32 {T0}, s77, 6
    s_add_u32 {sG2T}, {sG2T}, {T0}
    s_lshl_b32 {T0}, {sW}, 16
    s_add_u32 {sG2X}, {sG2T}, {T0}
    s_lshl_b32 {sG2S}, s77, 8
    s_lshl_b32 {sLG}, s52, 10
    s_lshl_b32 {sCG}, s76, 9
    s_add_u32 {sCG}, {sCG}, {GRP}
    s_lshl_b32 {sCA}, s52, 9
    s_lshl_b32 {T0}, {sW}, 7
    s_add_u32 {sCA}, {sCA}, {T0}
    s_add_u32 {sCA}, {sCA}, {GRP}
    s_lshl_b32 {T0}, s54, 6
    s_lshl_b32 {T1}, s52, 8
    s_add_u32 {T0}, {T0}, {T1}
    s_lshl_b32 {T1}, {sW}, 19
    s_add_u32 {sSTQ}, {T0}, {T1}
    s_cmp_ge_u32 {sJ}, 28
    s_cselect_b32 {sG1X}, {sSTQ}, {sG1X}
    s_cselect_b32 {sG1H}, {OOB - 0x4000000}, {sG1H}
    s_cselect_b32 {sCA}, {OOB}, {sCA}
    s_lshl_b32 {sEW}, {sW}, 11
    s_xor_b32 {sER}, {sEW}, 2048
    s_add_u32 {sEW}, {sEW}, {EXR}
    s_add_u32 {sER}, {sER}, {EXR}
    s_mul_i32 {sGW}, {sW}, 6144
    s_add_u32 {sGW}, {sGW}, {G2EX}""")
    for s in (1, 2, 3):
        g(f"s_xor_b32 {T0}, {sW}, {s}\ns_mul_i32 {T0}, {T0}, 6144\ns_add_u32 s{sGR+s-1}, {T0}, {G2EX + (s-1)*2048}")
    g(f"""s_lshl_b32 s66, s76, 3
    s_mul_i32 s67, s55, 16640
    s_lshl_b32 {T2}, {sHW}, 10
    s_sub_u32 s67, s67, {T2}
    s_add_u32 s67, s67, {KC + 4088 - 2048 - 960}
    s_mul_i32 s68, s55, 7680
    s_mul_i32 {T2}, {sHW}, 1280
    s_sub_u32 s69, s68, {T2}
    s_add_u32 s69, s69, {UB + 17*80}
    s_mul_i32 s70, s55, 5120
    s_add_u32 s70, s70, {XB}
    s_add_u32 s71, s70, {T2}
    s_add_u32 s68, s68, {UB + 2560}
    s_lshl_b32 s72, {sHW}, 4
    s_lshl_b32 s73, {sHW}, 5
    s_lshl_b32 s74, {sW}, 10
    s_mov_b32 s75, {TB - 2*17024}
    s_mov_b32 s81, {TB + 254}""")
    blk = f"""v_and_b32 v72, 7, {vL}
    v_add_u32 v72, s66, v72
    v_lshlrev_b32 {vPOLL}, 7, v72
    v_lshlrev_b32 v73, 3, {vL}
    v_add_u32 v73, s78, v73
    v_lshlrev_b32 {vARR}, 7, v73
    v_and_b32 v74, 3, {vL}
    v_lshlrev_b32 {vPOLLG}, 7, v74
    v_mov_b32 {vONE}, 1
    v_lshlrev_b32 {vT4}, 2, v0
    v_lshlrev_b32 {vT16}, 4, v0
    v_sub_u32 v75, 3, v74
    v_mul_u32_u24 {vCA}, 4160, v75
    v_xor_b32 v76, s72, {vL}
    v_lshlrev_b32 {vWDL}, 4, v76
    v_and_b32 v76, 28, v76
    v_lshlrev_b32 v77, 3, v41
    v_sub_u32 v76, v77, v76
    v_lshl_add_u32 {vCA}, v76, 1, {vCA}
    v_add_u32 {vCA}, s67, {vCA}
    v_mul_u32_u24 v78, 80, v40
    v_lshl_add_u32 {vCB}, v41, 4, v78
    v_add_u32 {vCB}, s69, {vCB}
    v_add3_u32 v78, v78, v77, s73
    v_add_u32 {vEXA}, s70, v78
    v_add_u32 {vCE}, s68, v78
    v_lshrrev_b32 v79, 4, v0
    v_mul_u32_u24 {vNU}, 80, v79
    v_and_b32 v79, 15, v0
    v_lshl_add_u32 {vNU}, v79, 2, {vNU}
    v_lshrrev_b32 v80, 2, {vL}
    v_mul_u32_u24 {vCO}, 80, v80
    v_lshl_add_u32 {vCO}, v74, 4, {vCO}
    v_add_u32 {vCO}, s71, {vCO}
    v_lshrrev_b32 v81, 7, v0
    v_mul_u32_u24 v81, 7680, v81
    v_and_b32 v82, 127, v0
    v_lshl_add_u32 {vZA}, v82, 4, v81
    v_lshl_add_u32 {vZB}, v40, 4, v81
    v_lshlrev_b32 {vLGA}, 3, v40
    v_lshl_add_u32 {vSTA}, v41, 2, {vLGA}
    v_lshlrev_b32 {vTW}, 8, v41
    v_lshl_add_u32 {vTW}, v40, 1, {vTW}
    v_add_u32 {vTW}, s74, {vTW}
    v_lshrrev_b32 v83, 2, v0
    v_lshlrev_b32 {vTS}, 12, v83
    v_lshl_add_u32 {vTS}, v74, 4, {vTS}
    v_lshl_add_u32 v47, v41, 8, {vTW}
    v_bfe_u32 v84, {vL}, 4, 1
    v_lshl_add_u32 v48, v84, 1, v41
    v_lshlrev_b32 v48, 10, v48
    v_bfe_u32 v85, {vL}, 2, 2
    v_lshl_add_u32 v48, v85, 5, v48
    v_lshl_add_u32 v48, v74, 3, v48
    v_add_u32 v48, s50, v48
    v_lshlrev_b32 v51, 9, v41
    v_lshl_add_u32 v51, v85, 6, v51
    v_lshl_add_u32 v51, v84, 5, v51
    v_lshl_add_u32 v51, v74, 3, v51
    v_add_u32 v51, s50, v51
    v_lshlrev_b32 v86, 3, v0
    v_sub_u32 v86, 2047, v86
    v_cvt_f32_i32 v87, v86
    v_lshlrev_b32 v86, 1, v86
    v_add_u32 v86, {TB}, v86""".split('\n')
    import struct
    fh = lambda x: hex(struct.unpack('I', struct.pack('f', x))[0])
    for i in range(0, 12, 2):
        a = 88 + 2*i
        for j in range(2):
            blk.append(f"v_add_f32 v{a+j}, {fh(-float(i+j))}, v87")
            if i + j >= 8: blk.append(f"v_max_f32 v{a+j}, 0, v{a+j}")
        blk.append(f"v_cvt_pk_bf16_f32 v{a}, v{a}, v{a+1}")
        for j in range(2):
            if i + j < 11:
                blk.append(f"v_mad_u32_u16 v{a+2+j}, v{a}, 2, s75" + (" op_sel:[1,0,0,0]" if j else ""))
                blk.append(f"v_subrev_u32 v{140+i+j}, {2*(i+j)}, v86")
                blk.append(f"v_med3_i32 v{140+i+j}, v{a+2+j}, v{140+i+j}, s81")
    g.block(blk)
    return tk

def late_addr(g):
    blk = f"""v_lshrrev_b32 v41, 5, {vL}
    v_bfe_u32 v47, {vL}, 2, 2
    v_lshlrev_b32 v48, 11, v41
    v_lshl_add_u32 v48, v47, 8, v48
    v_bfe_u32 v49, {vL}, 4, 1
    v_lshl_add_u32 v48, v49, 5, v48
    v_and_b32 v50, 3, {vL}
    v_lshl_add_u32 v48, v50, 3, v48
    v_add_u32 v48, {RING}, v48
    v_lshrrev_b32 v51, 4, {vL}
    v_xor_b32 v52, v47, v51
    v_lshlrev_b32 v52, 6, v52
    v_lshl_add_u32 v52, v51, 12, v52
    v_lshl_add_u32 {vXD}, v50, 4, v52
    v_lshrrev_b32 v53, 2, {vL}
    v_lshlrev_b32 v53, 12, v53
    v_lshl_add_u32 v53, v50, 4, v53
    v_add_u32 v{vHR}, {sRING}, {vL16}
    v_add_u32 v{vHR+1}, 0xc000, v{vHR}
    v_lshlrev_b32 {vRES}, 14, v41
    v_and_b32 v54, 31, {vL}
    v_lshl_add_u32 {vRES}, v54, 1, {vRES}""".split('\n')
    for t in range(4):
        blk += [f"v_xor_b32 v{42+t}, {t}, v47", f"v_lshl_add_u32 v{vXR+t}, v{42+t}, 6, v48", f"v_add_u32 v{vXR+4+t}, 0xc000, v{vXR+t}"]
    g.block(blk)
    g(f"s_cmp_ge_u32 {sJ}, 28\ns_cselect_b64 vcc, -1, 0\nv_cndmask_b32 {vXD}, {vXD}, v53, vcc")

def final_addr():
    return f"""v_and_b32 v152, 31, {vL}
    v_lshrrev_b32 v153, 5, {vL}
    v_mul_u32_u24 {vOW}, 144, v152
    v_lshl_add_u32 {vOW}, v153, 3, {vOW}
    s_lshl_b32 {T0}, {sW}, 5
    v_add_u32 {vOW}, {T0}, {vOW}
    v_lshrrev_b32 v154, 3, v0
    v_and_b32 v155, 7, v0
    v_mul_u32_u24 {vOR}, 144, v154
    v_lshl_add_u32 {vOR}, v155, 4, {vOR}
    v_lshlrev_b32 {vOS}, 10, v154
    v_lshl_add_u32 {vOS}, v155, 4, {vOS}"""

def dots(P, S, Q):
    L = [f"v_dot2_f32_bf16 v{S}, v{P}, {T2}, 0", f"v_dot2_f32_bf16 v{Q}, v{P}, v{P}, 0"]
    for i in range(1, 4):
        L += [f"v_dot2_f32_bf16 v{S}, v{P+i}, {T2}, v{S}", f"v_dot2_f32_bf16 v{Q}, v{P+i}, v{P+i}, v{Q}"]
    return L

def prep(g, tk):
    opt = g.opt
    g.stamp('start')
    g.wait_vm(tk['x0'])
    g.stamp('ldx0')
    for h in range(2):
        for i in range(8):
            g.ds(f"ds_write_b16{'_d16_hi' if i&1 else ''} v47, v{52+4*h+(i>>1)} offset:{PT + h*4096 + i*64}")
    g(f"s_mov_b32 {T2}, 0x3f803f80")
    a, b = dots(112, 120, 121), dots(116, 122, 123)
    for x, y in zip(a, b): g(x); g(y)
    g(f"""v_permlane32_swap_b32 v120, v121
    v_permlane32_swap_b32 v122, v123
    v_add_f32 v120, v120, v121
    v_add_f32 v122, v122, v123
    v_lshrrev_b32 v124, 4, {vL}
    v_permlane16_swap_b32 v120, v122
    v_add_f32 v120, v120, v122
    v_and_b32 v125, 1, v124
    v_lshrrev_b32 v124, 1, v124
    v_add_f32_dpp v120, v120, v120 row_ror:8 row_mask:0xf bank_mask:0xf
    v_lshlrev_b32 v125, 3, v125
    v_lshl_add_u32 v125, v124, 2, v125
    v_add_f32_dpp v120, v120, v120 row_ror:4 row_mask:0xf bank_mask:0xf
    s_lshl_b32 {T0}, {sW}, 4
    v_add_u32 v125, {T0}, v125
    v_add_f32_dpp v120, v120, v120 row_ror:2 row_mask:0xf bank_mask:0xf
    s_nop 1
    v_add_f32_dpp v120, v120, v120 row_ror:1 row_mask:0xf bank_mask:0xf""")
    g.ds(f"ds_write_b32 v125, v120 offset:{PS}")
    g.wait_vm(tk['w'])
    g.stamp('ldw')
    for w2 in range(4):
        for hh in range(2):
            g.ds(f"ds_read_b64_tr_b16 v[{72+4*w2+2*hh}:{73+4*w2+2*hh}], v48 offset:{KC + w2*256 + hh*128}")
    for x in range(2):
        for hh in range(2):
            g.ds(f"ds_read_b64_tr_b16 v[{88+4*x+2*hh}:{89+4*x+2*hh}], v51 offset:{KC + 4096 + hh*1024 + x*256}")
    g.wait_lg_all(); g.barrier()
    for h in range(2): g.ds(f"ds_read_b128 v[{96+4*h}:{99+4*h}], {vT16} offset:{PT + h*4096}")
    g.ds(f"ds_read_b128 v[104:107], {vL16} offset:{PS}")
    g(f"s_add_u32 {T0}, {sG2T}, {XT[0]}\ns_add_u32 {T1}, {sG2T}, {XT[0] + 2048}\ns_lshl_b32 {T2}, s2, 6\ns_add_u32 {T2}, {T2}, {STS[0]}")
    g.wait_lg_all()
    for h in range(2): g.vmem(f"buffer_store_dwordx4 v[{96+4*h}:{99+4*h}], {vTS}, {sWS}, {(T0, T1)[h]} offen sc1")
    g.begin_w0(); g("s_mov_b64 exec, 0xf")
    g.vmem(f"buffer_store_dwordx4 v[104:107], {vL16}, {sWS}, {T2} offen sc1")
    g("s_mov_b64 exec, -1"); g.end_w0()
    for w2 in range(4):
        g(f"s_add_u32 {T0}, s47, {w2*32768}")
        g.vmem(f"buffer_store_dwordx4 v[{72+4*w2}:{75+4*w2}], {vL16}, {sWS}, {T0} offen sc1")
    for x in range(2):
        g(f"s_add_u32 {T0}, s49, {x*1024}")
        g.vmem(f"buffer_store_dwordx4 v[{88+4*x}:{91+4*x}], {vL16}, {sWS}, {T0} offen sc1")
    g.stamp('prepst')
    B = f"""v_lshlrev_b32 {vD}, 16, {vD}
    v_lshlrev_b32 v60, 16, v60
    v_lshlrev_b32 v61, 16, v61
    v_lshlrev_b32 v62, 16, v62
    v_lshlrev_b32 v63, 16, v63
    v_lshlrev_b32 v64, 16, v64
    v_mul_f32 v60, 0x3fb8aa3b, v60
    v_mul_f32 v64, 0x3fb8aa3b, v64
    v_exp_f32 v60, v60
    v_exp_f32 v64, v64
    v_cvt_pk_bf16_f32 v60, v60, v64
    v_and_b32 v64, 0xffff0000, v60
    v_lshlrev_b32 v60, 16, v60
    v_mul_f32 v60, v60, v64
    v_mul_f32 v61, v61, v64
    v_add_f32 v65, v64, v64
    v_mul_f32 v62, v62, v65
    v_mul_f32 v63, v63, v65
    v_mul_f32 v60, 0xbfb8aa3b, v60
    s_mov_b32 {T0}, 0x3e22f983
    v_mul_f32 v64, {T0}, v61
    v_fma_f32 v65, v61, {T0}, -v64
    v_fmac_f32 v65, 0x31dc9c88, v61
    v_lshrrev_b32 v47, 7, v0
    v_mul_u32_u24 v47, 46464, v47
    v_and_b32 v48, 127, v0
    v_lshl_add_u32 v47, v48, 2, v47
    v_add_u32 v47, {KG}, v47""".split('\n')
    CP = 62; cnt = [0]
    def put(row, z, neg=False):
        t = 244 + (cnt[0] % 12); cnt[0] += 1
        B.append(f"v_cvt_pk_bf16_f32 v{t}, v{z}, {'-' if neg else ''}v{z+1}")
        B.append(f"ds_write_b32 v47, v{t} offset:{row*528}")
    reg = {}; nxt = [160]
    def new(t):
        reg[t] = nxt[0]; nxt[0] += 2; assert nxt[0] <= 244; return reg[t]
    for n, (t, c) in enumerate(((1, "1.0"), (16, "0x41800000"), (256, "0x43800000"))):
        d = new(t); a = 108 + 4*n
        B += f"""v_mul_f32 v{a}, {c}, v60
        v_mul_f32 v{a+1}, {c}, v64
        v_exp_f32 v{a}, v{a}
        v_fract_f32 v{a+1}, v{a+1}
        v_fmac_f32 v{a+1}, {c}, v65
        v_cos_f32 v{a+2}, v{a+1}
        v_sin_f32 v{a+3}, v{a+1}
        v_mul_f32 v{d}, v{a}, v{a+2}
        v_mul_f32 v{d+1}, v{a}, v{a+3}""".split('\n')
    for s in range(3):
        for t in (1, 16, 256):
            a = t << s; B += cmul(new(2*a), reg[a], reg[a])
    B += ["v_mov_b32 v66, 0x3f80", "ds_write_b32 v47, v66 offset:0"]
    for t in (1, 2, 4, 8, 16, 32, 64): put(rho(t), reg[t])
    for t in (3, 5, 6, 7, 9, 10, 11, 12, 13, 14, 15):
        hi = 1 << (t.bit_length() - 1)
        B += cmul(new(t), reg[hi], reg[t - hi]); put(rho(t), reg[t])
    cur = {t: reg[t] for t in range(9, 16)}
    for s in range(3):
        for t in range(9, 16):
            d = (206, 220, 206)[s] + 2*(t - 9)
            B += cmul(d, cur[t], cur[t]); cur[t] = d
            put(rho(t << (s+1)), d)
    H = {}; hn = [0]
    def hrow(row, t, base_t, mul_t):
        d = 72 + 2*(hn[0] % 32); hn[0] += 1
        B.extend(cmul(d, CP if base_t is None else H[base_t], reg[mul_t])); H[t] = d; put(row, d, True)
    put(40, CP, True)
    for i in range(1, 16):
        hi = 1 << (i.bit_length() - 1)
        hrow(40 + i, 16*i, None if i == hi else 16*(i - hi), 16*hi)
    for o in (1, 2, 3):
        st = 16 << o
        hrow(56 + 8*(o-1), 8*st, None, 8*st)
        for m in range(1, 8):
            hi = 1 << (m.bit_length() - 1)
            hrow(56 + 8*(o-1) + m, (8+m)*st, (8 + m - hi)*st, hi*st)
    hrow(80, 2048, None, 2048)
    B += f"""v_and_b32 v48, 15, {vL}
    v_lshrrev_b32 v49, 4, {vL}
    s_mul_i32 {T1}, s55, 46464
    s_add_u32 {T1}, {T1}, {KG}
    v_lshlrev_b32 v50, 4, v49
    v_add_u32 v50, {T1}, v50
    v_mul_u32_u24 v51, 528, v48
    v_add_u32 v52, v50, v51
    s_mul_i32 {T2}, {sHW}, {32*528}
    v_add_u32 v53, {T2}, v52
    s_mul_i32 s66, {sHW}, 3
    s_add_u32 s67, {sHW}, 1
    v_lshlrev_b32 v56, 7, v49
    v_lshl_add_u32 v56, v48, 1, v56
    s_lshl_b32 s68, s55, 11
    s_add_u32 s68, s68, {TB}
    v_add_u32 v56, s68, v56
    s_lshl_b32 s69, {sHW}, 10
    v_add_u32 v57, s69, v56""".split('\n')
    for dst, sh, a in ((54, "s66", 40), (55, "s67", 42)):
        B += f"""v_lshlrev_b32 v{a}, {sh}, v48
        v_cvt_f32_u32 v{a+1}, v{a}
        v_lshrrev_b32 v{a+1}, 20, v{a+1}
        v_subrev_u32 v{a+1}, 1032, v{a+1}
        v_med3_i32 v{a+1}, v{a+1}, v{a}, 7
        v_mul_u32_u24 v{a+1}, 528, v{a+1}
        v_add_u32 v{dst}, v50, v{a+1}""".split('\n')
    S = sched([x.strip() for x in B], opt.get('klat', 4))
    g.kblock = S
    cut = int(len(S)*opt.get('kcut', 45)/100)
    for i, x in enumerate(S):
        if i == cut:
            g.wait_vm_all(); g.barrier()
            g.begin_w0()
            g(f"s_and_b32 {T3}, s2, 3\ns_lshl_b32 {T3}, {T3}, 6\ns_mov_b64 exec, 1")
            g.vmem(f"buffer_atomic_add {vONE}, v68, {sDBG}, {T3} offen offset:16 sc1")
            g("s_mov_b64 exec, -1"); g.end_w0(); g.stamp('arrP')
        (g.ds if x.startswith('ds_') else g)(x)
    g.wait_lg_all(); g.barrier()
    g.stamp('kgH')
    toks = []
    def mm(kk, b):
        c0 = "0" if kk == 0 else "v[72:75]"; c1 = "0" if kk == 0 else "v[76:79]"
        g(f"v_mfma_f32_16x16x32_bf16 v[72:75], v[{b}:{b+3}], v[{b+4}:{b+7}], {c0}")
        g(f"v_mfma_f32_16x16x32_bf16 v[76:79], v[{b+8}:{b+11}], v[{b+12}:{b+15}], {c1}")
    def pissue():
        g.begin_w0(); g(f"v_lshrrev_b32 v65, 1, {vPOLLG}\ns_mov_b32 s64, 16"); g.st['pp'] = g.poll_issue("s64", "v65", sDBG); g.end_w0()
    def pcheck():
        g.begin_w0(); g.poll_check(g.st['pp'], "s64", "v65", 64, 10, sDBG); g.end_w0()
    pp = opt.get('p_poll', 'table')
    for kk in range(8):
        b = 160 + 16*(kk % 4)
        if kk >= 4: g.wait_lg(toks[kk-4]); mm(kk-4, b)
        g.ds(f"ds_read_b128 v[{b}:{b+3}], v53 offset:{40*528 + kk*64}")
        g.ds(f"ds_read_b128 v[{b+4}:{b+7}], v54 offset:{kk*64}")
        g.ds(f"ds_read_b128 v[{b+8}:{b+11}], v52 offset:{56*528 + kk*64}")
        toks.append(g.ds(f"ds_read_b128 v[{b+12}:{b+15}], v55 offset:{kk*64}"))
        if kk == 3 and pp == 'table': pissue()
    for kk in range(4, 8):
        g.wait_lg(toks[kk]); mm(kk, 160 + 16*(kk % 4))
    g(f"""v_mov_b32 v48, {TB - 8}
    v_and_b32 v58, 31, v0
    v_lshrrev_b32 v59, 2, v58
    v_mul_u32_u24 v59, 4160, v59
    v_and_b32 v58, 3, v58
    v_lshl_add_u32 v59, v58, 4, v59""")
    g.ds("ds_write_b64 v48, v[68:69]"); g.ds("ds_write_b64 v48, v[68:69] offset:2048")
    g.ds(f"ds_write_b128 v59, v[68:71] offset:{KC + 4096}")
    g(f"""v_cvt_pk_bf16_f32 v48, v72, v73
    v_cvt_pk_bf16_f32 v49, v74, v75
    v_cvt_pk_bf16_f32 v50, v76, v77
    v_cvt_pk_bf16_f32 v51, v78, v79""")
    for r in range(4): g.ds(f"ds_write_b16{'_d16_hi' if r&1 else ''} v57, v{48+(r>>1)} offset:{r*32}")
    g(f"s_sub_u32 exec_hi, 0, {sHW}\ns_not_b32 exec_lo, exec_hi")
    for r in range(4): g.ds(f"ds_write_b16{'_d16_hi' if r&1 else ''} v56, v{50+(r>>1)} offset:{512 + r*32}")
    g("s_mov_b64 exec, -1")
    if pp == 'table': pcheck()
    g.wait_lg_all(); g.barrier()
    g.stamp('kgT')
    tg = []
    for ch in range(2):
        for i in range(11): t = g.ds(f"ds_read_u16 v{160+16*ch+i}, v{140+i} offset:{ch*2048}")
        tg.append(t)
    if pp == 'table': p_go(g)
    else: pissue()
    for ch in range(2):
        g.wait_lg(tg[ch])
        for s in range(4):
            q = 192 + 16*ch + 4*s
            for i in range(4):
                a = 160 + 16*ch + s + 2*i
                g(f"v_lshl_or_b32 v{q+i}, v{a+1}, 16, v{a}")
            g.ds(f"ds_write_b128 {vT16}, v[{q}:{q+3}] offset:{KC + ch*16640 + s*4160}")
            g.bg(opt.get('bg_k', 1))
    if pp != 'table':
        pcheck(); g.barrier(); p_go(g)
    g.stamp('kgen')

R0, R1 = 104, 120
def p_go(g):
    g.st['t0'] = conv_loads(g, 0, 0, R0); g.st['t1'] = conv_loads(g, 0, 1, R1)
    def mkwd(i): return lambda: wd_load(g, i)
    def mkw1(k):
        def f():
            g(f"s_add_u32 {TBG}, {sW1}, {k*1024}")
            g.st['w1'] = g.vmem(f"buffer_load_dwordx4 {W1R(k)}, {vL16}, {sWS}, {TBG} offen sc1")
        return f
    n0 = g.opt.get('n_wd0', 16)
    g.bgq = [mkwd(i) for i in range(n0)] + [mkw1(k) for k in range(32)] + [mkwd(i) for i in range(n0, 56)]
def wd_load(g, i):
    g(f"s_add_u32 {TBG}, {(sWD, sWDX)[i & 1]}, {(i >> 1)*2048}")
    return g.vmem(f"buffer_load_dwordx4 {WDR(i>>1, i&1)}, {vWDL}, {sWS}, {TBG} offen sc1")

def conv_loads(g, l, h, R):
    for j in range(2):
        g(f"s_mov_b32 {T0}, {STS[l] + (2*h+j)*4096}")
        g.vmem(f"buffer_load_dwordx4 v[{R+4*j}:{R+4*j+3}], {vT16}, {sWS}, {T0} offen sc1")
    for ch in range(2):
        g(f"s_add_u32 {T0}, {sCONV}, {XT[2*l] + ch*4096 + h*2048}")
        for j in range(2):
            t = g.vmem(f"buffer_load_dword v{R+8+2*ch+j}, {vT4}, {sWS}, {T0} offen offset:{j*1024} sc1")
    return t

def ln_finalize(S, Q, t):
    return f"""v_mul_f32 v{S}, 0x3b000000, v{S}
    v_mul_f32 v{Q}, 0x3b000000, v{Q}
    v_fma_f32 v{Q}, -v{S}, v{S}, v{Q}
    v_max_f32 v{Q}, 0, v{Q}
    v_cvt_pk_bf16_f32 v{t}, v{S}, v{Q}
    v_lshlrev_b32 v{S}, 16, v{t}
    v_and_b32 v{Q}, 0xffff0000, v{t}
    v_add_f32 v{Q}, 0x3727c5ac, v{Q}
    v_cvt_pk_bf16_f32 v{Q}, v{Q}, v{Q}
    v_lshlrev_b32 v{Q}, 16, v{Q}
    v_sqrt_f32 v{Q}, v{Q}
    v_cvt_pk_bf16_f32 v{Q}, v{Q}, v{Q}
    v_lshlrev_b32 v{Q}, 16, v{Q}
    v_rcp_f32 v{Q}, v{Q}""".split('\n')

def norm_gen(g, h, R, tok):
    B = []
    for k in range(4): B += ln_finalize(R + 2*k, R + 2*k + 1, 152 + k)
    for ch in range(2):
        for j in range(2):
            x = R + 8 + 2*ch + j; s0 = R + 4*j; a = 140 + 2*(2*ch + j)
            B.append(f"ds_write_b32 {vNU}, v{x} offset:{XB + ch*5120 + (2*h+j)*1280}")
            B += f"""v_lshlrev_b32 v{a}, 16, v{x}
            v_and_b32 v{a+1}, 0xffff0000, v{x}
            v_sub_f32 v{a}, v{a}, v{s0}
            v_sub_f32 v{a+1}, v{a+1}, v{s0+2}
            v_mul_f32 v{a}, v{a}, v{s0+1}
            v_mul_f32 v{a+1}, v{a+1}, v{s0+3}
            v_cvt_pk_bf16_f32 v{a}, v{a}, v{a+1}""".split('\n')
            B.append(f"ds_write_b32 {vNU}, v{a} offset:{UB + 2560 + ch*7680 + (2*h+j)*1280}")
    g.wait_vm(tok)
    for i, x in enumerate(sched([y.strip() for y in B], 3)):
        (g.ds if x.startswith('ds_') else g)(x)
        if i % 11 == 10: g.bg(g.opt.get('bg_n', 1))
        yield

ACC0, ACC1, CBUF = 40, 56, 72
def conv_mfma(g, grp, hooks, nfill=0):
    acc = ACC0 if grp == 'A' else ACC1
    boff = 2560 if grp == 'B' else 0; aoff = 0 if grp == 'F' else 2048
    LK = 3
    def reads(i):
        d, c = divmod(i, 2); b = CBUF + (i % 5)*8
        g.ds(f"ds_read_b128 v[{b}:{b+3}], {vCB} offset:{(15-d)*80 + 32*c + boff}")
        g.ds(f"ds_read_b64 v[{b+4}:{b+5}], {vCA} offset:{aoff + 64*(15-d) + 32*c}")
        return g.ds(f"ds_read_b64 v[{b+6}:{b+7}], {vCA} offset:{aoff + 64*(15-d) + 32*c + 8}")
    tk = {i: reads(i) for i in range(LK)}
    for i in range(32):
        if i + LK < 32: tk[i+LK] = reads(i + LK)
        g.wait_lg(tk[i])
        b = CBUF + (i % 5)*8
        c = "0" if (i == 0 and grp != 'B') else f"v[{acc}:{acc+15}]"
        g(f"v_mfma_f32_32x32x16_bf16 v[{acc}:{acc+15}], v[{b+4}:{b+7}], v[{b}:{b+3}], {c}")
        if i % 2 == 1: g.bg(g.opt.get('bg_' + grp, 1))
        if i in hooks: hooks[i]()
        g.fill(nfill)

def conv_epi(g, l, h, pre=None, post1=None, post2=None):
    acc = ACC0 if h == 0 else ACC1
    Y = 132; U = 140; X = 144; RC = 112
    g(f"v_add_u32 v150, {sEW}, {vL16}"); yield
    g(f"v_add_u32 v151, {sER}, {vL16}"); yield
    for k in range(2):
        g.ds(f"ds_read_b64 v[{U+2*k}:{U+2*k+1}], {vCE} offset:{h*2560 + 16*k}"); yield
        t = g.ds(f"ds_read_b64 v[{X+2*k}:{X+2*k+1}], {vEXA} offset:{h*2560 + 16*k}"); yield
    g.ds(f"ds_write_b128 v150, v[{acc+8}:{acc+11}]"); yield
    tw = g.ds(f"ds_write_b128 v150, v[{acc+12}:{acc+15}] offset:1024"); yield
    g.wait_lg(t)
    B = []
    for k in range(4):
        B += f"""v_lshlrev_b32 v{Y+2*k}, 16, v{X+k}
        v_and_b32 v{Y+2*k+1}, 0xffff0000, v{X+k}
        v_lshlrev_b32 v{X+k}, 16, v{U+k}
        v_and_b32 v{U+k}, 0xffff0000, v{U+k}
        v_fmac_f32 v{Y+2*k}, v{X+k}, {vD}
        v_fmac_f32 v{Y+2*k+1}, v{U+k}, {vD}
        v_add_f32 v{Y+2*k}, v{Y+2*k}, v{acc+2*k}
        v_add_f32 v{Y+2*k+1}, v{Y+2*k+1}, v{acc+2*k+1}""".split('\n')
    B = sched([x.strip() for x in B], 3)
    for x in B[:8]: g(x); yield
    if pre: pre()
    g.wait_lg(tw); g.barrier()
    g.ds(f"ds_read_b128 v[{RC}:{RC+3}], v151"); yield
    t = g.ds(f"ds_read_b128 v[{RC+4}:{RC+7}], v151 offset:1024"); yield
    for i, x in enumerate(B[8:]):
        g(x)
        if post1 and i % 3 == 0: post1()
        yield
    g.wait_lg(t)
    for k in range(8): g(f"v_add_f32 v{Y+k}, v{Y+k}, v{RC+k}"); yield
    for k in range(4): g(f"v_cvt_pk_bf16_f32 v{U+k}, v{Y+2*k}, v{Y+2*k+1}"); yield
    for k in range(2): t = g.ds(f"ds_write_b64 {vEXA}, v[{U+2*k}:{U+2*k+1}] offset:{h*2560 + 16*k}"); yield
    g(f"s_add_u32 s67, {sCST}, {XT[2*l+1] + h*2048}"); yield
    g.wait_lg(t); g.barrier()
    t = g.ds(f"ds_read_b128 v[{RC}:{RC+3}], {vCO} offset:{h*2560}"); yield
    if post2: post2()
    yield; yield; yield
    g.wait_lg(t)
    g.st['cs'] = g.vmem(f"buffer_store_dwordx4 v[{RC}:{RC+3}], {vL16}, {sWS}, s67 offen sc1")

def conv(g, l, pend):
    opt = g.opt; st = g.st
    g(f"v_mov_b32 v40, 0\nv_mov_b32 v41, 0\nv_mov_b32 v42, 0\nv_mov_b32 v43, 0")
    g.ds(f"ds_write_b128 {vZA}, v[40:43] offset:{UB}"); g.ds(f"ds_write_b128 {vZB}, v[40:43] offset:{UB + 2048}")
    if pend:
        g.wait_vm(pend[0]); g.barrier(); g.arrive(pend[1])
        g.stamp('arrX1')
    for _ in norm_gen(g, 0, R0, st['t0']): pass
    g.wait_lg_all(); g.barrier()
    g.stamp(f'c{l}go')
    hooks = {}
    if l == 1:
        def h2():
            g.w0_check('pt', 12); g.barrier(); st['t1'] = conv_loads(g, l, 1, R1)
        hooks = {opt.get('c_p1', 20): lambda: g.w0_issue('pt', SET_X(1)), opt.get('c_p2', 30): h2}
    conv_mfma(g, 'A', hooks)
    g.stamp(f'c{l}A')
    g.fq.append([conv_epi(g, l, 0), 2, 'e0'])
    def lazy_norm():
        yield from norm_gen(g, 1, R1, st['t1'])
    g.fq.append([lazy_norm(), opt.get('c_nd', 0 if l == 0 else 6), 'n1'])
    conv_mfma(g, 'F', {}, opt.get('c_fill', 3))
    g.stamp(f'c{l}F')
    g.drain()
    g.wait_vm(st['cs']); g.wait_lg_all(); g.barrier()
    g.arrive(SET_C(l, 0))
    g.stamp(f'c{l}N')
    conv_mfma(g, 'B', {opt.get('c_p3', 24): lambda: g.w0_issue('pc0', SET_C(l, 0))})
    g.stamp(f'c{l}Bm')
    if l == 0: late_addr(g)
    ring = Ring(g, l); st['ring'] = ring
    first = [True]
    def post1():
        if first[0]: g.stamp(f'f{l}go'); first[0] = False
        if ring.next < 8: ring.issue()
    def post2():
        assert ring.next == 8
        L = g.lab('sk'); g(f"s_cmp_ge_u32 {sJ}, 28\ns_cbranch_scc1 {L}")
        while ring.next < opt.get('g1_pre', 10): ring.issue()
        g(f"{L}:")
    for _ in conv_epi(g, l, 1, lambda: g.w0_check('pc0', 14 + l), post1, post2): pass
    g.stamp(f'c{l}B')
    return st['cs']

class Ring:
    def __init__(self, g, l):
        self.g = g; self.l = l; self.tok = {}; self.next = 0; self.prepped = False
    def prep(self):
        g = self.g; Q = self.next; l = self.l
        g(f"s_add_u32 m0, {sRING}, {(Q % NQ)*4096}")
        if Q < 64:
            h, k = divmod(Q, 32)
            g(f"s_add_u32 {TD}, {sG1X}, {XT[2*l+1] + h*2048 + k*65536}")
        else:
            h, b = divmod(Q - 64, 28)
            g(f"s_add_u32 {TD}, {sG2H}, {HB[l] + h*32*112*1024 + b*1024}")
        self.prepped = True
    def issue(self):
        if not self.prepped: self.prep()
        Q = self.next; self.next += 1; self.prepped = False
        self.tok[Q] = self.g.vmem(f"buffer_load_dwordx4 {vXD if Q < 64 else vL16}, {sWS}, {TD} offen sc1 lds")

GACC, GBUF, GST, GBP = 40, 104, 136, 144
def g1_epi(g, l, h, t):
    a = GACC + 16*t
    B = [f"v_max_f32 v{a+r}, 0, v{a+r}" for r in range(8)] + [f"v_mul_f32 v{a+r}, v{a+r}, v{a+8+r}" for r in range(8)]
    B += [f"v_cvt_pk_bf16_f32 v{a+8+r}, v{a+2*r}, v{a+2*r+1}" for r in range(4)]
    for x in B: g(x); yield
    g(f"s_add_u32 s67, {sG1H}, {HB[l] + (32*h + t)*112*1024}"); yield
    g.st['hs'] = g.vmem(f"buffer_store_dwordx4 v[{a+8}:{a+11}], {vL16}, {sWS}, s67 offen sc1")

def g_arrive(g, l, h):
    g(f"s_add_u32 {T3}, {sCA}, {(2*l+h)*4096}\nv_mov_b32 v38, 0\ns_mov_b64 exec, 1")
    g.vmem(f"buffer_atomic_add {vONE}, v38, {sWS}, {T3} offen sc1")
    g("s_mov_b64 exec, -1")

def g1_role(g, l, ring, s1):
    opt = g.opt; st = g.st
    if l == 0:
        g.wait_vm(st['w1'])
        B = [f"s_mov_b32 {T2}, 0x3f803f80"] + [f"v_mov_b32 v{40+i}, 0" for i in range(4)]
        for k in range(32):
            for i in range(4):
                if k < 24: src = f"v{160+4*k+i}"
                else:
                    src = f"v{48+4*(k-24)+i}"; B.append(f"v_accvgpr_read_b32 {src}, a{224+4*(k-24)+i}")
                B.append(f"v_dot2_f32_bf16 v{40+i}, {src}, {T2}, v{40+i}")
        for i, x in enumerate(sched(B, 4)):
            g(x)
            if i % 24 == 23 and ring.next < 16: ring.issue()
        g(f"""v_add_f32 v40, v40, v41
        v_add_f32 v42, v42, v43
        v_add_f32 v40, v40, v42
        v_mov_b32 v41, v40
        v_permlane32_swap_b32 v40, v41
        v_add_f32 v40, v40, v41
        v_sub_f32 v40, 0, v40
        v_cvt_pk_bf16_f32 v42, v40, v40
        v_and_b32 v43, 0xffff0000, v42
        v_sub_f32 v40, v40, v43
        v_cvt_pk_bf16_f32 v44, v40, v40
        v_and_b32 v43, 0xffff0000, v44
        v_sub_f32 v40, v40, v43
        v_cvt_pk_bf16_f32 v45, v40, v40
        v_and_b32 v42, 0xffff, v42
        v_or_b32 v42, v43, v42
        v_and_b32 v45, 0xffff, v45
        v_cmp_gt_u32 vcc, 32, {vL}
        v_cndmask_b32 v{vCS}, 0, v42, vcc
        v_cndmask_b32 v{vCS+1}, 0, v45, vcc
        v_mov_b32 v{vCS+2}, 0
        v_mov_b32 v{vCS+3}, 0""")
    kc = opt.get('g1_kc', 26)
    ops = []
    for h in range(2):
        for G in range(8):
            ks = range(4*G, 4*G + 4)
            if G == 7 or (G == 0 and h == 1): ops += [(h, k, t) for t in range(4) for k in ks]
            else:
                for k in ks:
                    ops += [(h, k, t) for t in range(4)]
                    if k == kc: ops += [(h, 'c', t) for t in range(4)]
    real = [i for i, o in enumerate(ops) if o[1] != 'c']
    slot = {i: n % 8 for n, i in enumerate(real)}
    lastuse = {}
    for i in real: lastuse[32*ops[i][0] + ops[i][1]] = i
    firstof = {}
    for i in real: firstof.setdefault((32*ops[i][0] + ops[i][1])//4, i)
    LK = 4; tk = {}; state = dict(G=0, free=-1)
    pc1 = opt.get('g1_pc1', 5); pg0 = opt.get('g1_pg0', 14)
    def reads(j, i):
        h, k, t = ops[j]; Q = 32*h + k; G = Q//4
        if firstof[G] == j and G > 0:
            g.wait_vm(ring.tok[4*G + 3])
            if G == 1: g.wait_vm(s1)
            if G == pc1: g.w0_check('pc1', 20 + l)
            if G == pg0: g.w0_check_g('pg0', 22 + l)
            g.barrier()
            if G == 1: g.arrive(SET_C(l, 1))
            if G == pc1 - 1: g.w0_issue('pc1', SET_C(l, 1))
            if G == pg0 - 1: g.w0_issue_g('pg0', l, 0)
            state['G'] = G
            if opt.get('gst') and l == 1: g.stamp(f'G{G}')
            while lastuse.get(state['free'] + 1, 1 << 30) < i: state['free'] += 1
        b = GBUF + 4*slot[j]
        for hh in range(2):
            off = (Q % NQ)*4096 + hh*1024
            a = f"v{vXR+4+t} offset:{off-0xc000}" if off >= 0xc000 else f"v{vXR+t} offset:{off}"
            tk[j] = g.ds(f"ds_read_b64_tr_b16 v[{b+2*hh}:{b+2*hh+1}], {a}")
    def allowed(n):
        if n >= 92: return False
        if n >= NQ and n - NQ > state['free']: return False
        if 32 <= n < 64 and state['G'] < pc1: return False
        if n >= 64 and state['G'] < pg0: return False
        return True
    g.wait_vm(ring.tok[3]); g.barrier()
    g.stamp(f'g1{l}go')
    nr = 0
    for n in range(LK): reads(real[n], 0); nr += 1
    arr_at = None
    for i, (h, k, t) in enumerate(ops):
        a = GACC + 16*t
        if k == 'c':
            g(f"v_mfma_f32_32x32x16_bf16 v[{a}:{a+15}], v[{vCS}:{vCS+3}], v[{GBP+2*t}:{GBP+2*t+3}], v[{a}:{a+15}]")
        else:
            if nr < len(real): reads(real[nr], i); nr += 1
            g.wait_lg(tk[i])
            if k == 0 and h == 1: g.drain(('g1', 0, t))
            b = GBUF + 4*slot[i]
            c = "0" if k == 0 else f"v[{a}:{a+15}]"
            g(f"v_mfma_f32_32x32x16_bf16 v[{a}:{a+15}], {W1R(k)}, v[{b}:{b+3}], {c}")
            if k == 31: g.fq.append([g1_epi(g, l, h, t), 2, ('g1', h, t)])
        Qc = 32*h + (k if k != 'c' else kc)
        if ring.prepped: ring.issue()
        elif allowed(ring.next) and (i % 4 == 0 or (i % 2 == 0 and ring.next < Qc + opt.get('g1_ahead', 18))): ring.prep()
        elif i % 4 == 2 and (i//4) % opt.get('bg_g', 2) == 0: g.bg(1)
        if k == opt.get('g1_lg', 20) and t == 3:
            g(f"s_add_u32 s66, {sLG}, {LG + l*16384 + h*8192}")
            for q in range(4):
                lgt = g.vmem(f"buffer_load_dwordx2 v[{GST+2*q}:{GST+2*q+1}], {vLGA}, {sWS}, s66 offen offset:{q*256} sc1")
        if k == kc - 1 and t == 0:
            if opt.get('gst') and l == 1: g.stamp(f'lgA{h}')
            g.wait_vm(lgt)
            L = g.lab('lg'); Ld = g.lab('lgd')
            g(f"""s_mov_b32 {sSPIN}, 0
            {L}:
            v_and_b32 v152, v{GST}, v{GST+2}
            v_and_b32 v153, v{GST+4}, v{GST+6}
            v_and_b32 v152, v152, v153
            v_and_b32 v152, 1, v152
            v_cmp_eq_u32 vcc, 0, v152
            s_cbranch_vccz {Ld}""")
            for q in range(4):
                g(f"buffer_load_dwordx2 v[{GST+2*q}:{GST+2*q+1}], {vLGA}, {sWS}, s66 offen offset:{q*256} sc1")
            g(f"""s_waitcnt vmcnt(0)
            s_add_u32 {sSPIN}, {sSPIN}, 1
            s_cmp_lt_u32 {sSPIN}, 0x8000
            s_cbranch_scc1 {L}
            {Ld}:
            s_mov_b32 {T2}, 0x03020302""")
            if opt.get('gst') and l == 1: g.stamp(f'lgB{h}')
            def bp():
                for q in range(4):
                    g(f"v_perm_b32 v{GBP+2*q}, v{GST+2*q}, v{GST+2*q}, {T2}"); yield
                    g(f"v_perm_b32 v{GBP+2*q+1}, v{GST+2*q}, v{GST+2*q}, {T2}"); yield
                g(f"v_mov_b32 v{GBP+8}, 0"); yield
                g(f"v_mov_b32 v{GBP+9}, 0"); yield
            g.fq.append([bp(), 0, 'bp'])
        if k == kc and t == 3: g.drain('bp')
        if h == 1 and k == opt.get('g1_arr', 10) and t == 0:
            assert not g.fq
            g.wait_vm(st['hs']); g_arrive(g, l, 0); g.stamp(f'g1{l}arr')
        if h == 0 and k == 31 and t == 3: g.stamp(f'g1{l}0m')
        g.fill(opt.get('g1_fill', 3))
    if ring.prepped: ring.issue()
    assert not g.bgq, len(g.bgq)
    g.stamp(f'g1{l}1m')

def stats_role(g, l, nq_issued, wdrest):
    r = G(g.opt); r.uid = g.uid + 1000; r.opt = dict(g.opt); r.opt['stamps'] = False
    r.wait_vm_all(); r.barrier()
    r.arrive(SET_C(l, 1))
    r(f"""v_and_b32 v41, 3, {vL}
    v_lshrrev_b32 v42, 5, {vL}
    v_bfe_u32 v43, {vL}, 2, 2
    v_lshlrev_b32 v42, 9, v42
    v_lshl_add_u32 v42, v43, 6, v42
    v_bfe_u32 v43, {vL}, 4, 1
    v_lshl_add_u32 v42, v43, 5, v42
    v_lshl_add_u32 v42, v41, 3, v42
    v_add_u32 v42, {sRING}, v42
    v_lshrrev_b32 v43, 5, {vL}
    v_lshl_add_u32 v43, v43, 2, {vLGA}
    s_lshl_b32 {T0}, {sW}, 8
    s_add_u32 {T0}, {T0}, {SCR}
    v_add_u32 v43, {T0}, v43""")
    for h in range(2):
        if h == 1:
            r.w0_issue('p', SET_C(l, 1)); r.w0_check('p', 30 + l); r.barrier()
            ring = Ring(r, l); ring.next = 32
            for k in range(8):
                r(f"s_add_u32 m0, {sRING}, {k*4096}\ns_add_u32 {T1}, {sSTQ}, {XT[2*l+1] + h*2048 + k*65536}")
                r.vmem(f"buffer_load_dwordx4 {vXD}, {sWS}, {T1} offen sc1 lds")
            r.wait_vm_all()
        for k in range(8):
            for hh in range(2):
                r.ds(f"ds_read_b64_tr_b16 v[{48+4*k+2*hh}:{49+4*k+2*hh}], v42 offset:{k*4096 + hh*256}")
        r(f"s_mov_b32 {T2}, 0x3f803f80\nv_mov_b32 v44, 0\nv_mov_b32 v45, 0\nv_mov_b32 v46, 0\nv_mov_b32 v47, 0")
        r.wait_lg_all()
        for i in range(32):
            a = 44 + 2*(i & 1)
            r(f"v_dot2_f32_bf16 v{a}, v{48+i}, {T2}, v{a}\nv_dot2_f32_bf16 v{a+1}, v{48+i}, v{48+i}, v{a+1}")
        r("v_add_f32 v44, v44, v46\nv_add_f32 v45, v45, v47\nv_permlane32_swap_b32 v44, v45\nv_add_f32 v44, v44, v45")
        r.ds(f"ds_write_b32 v43, v44 offset:{h*1024}")
        r.wait_lg_all(); r.barrier()
        r.begin_w0()
        for w in range(4): r(f"ds_read_b64 v[{48+2*w}:{49+2*w}], {vLGA} offset:{SCR + h*1024 + w*256}")
        r("s_waitcnt lgkmcnt(0)")
        r("v_add_f32 v48, v48, v50\nv_add_f32 v49, v49, v51\nv_add_f32 v52, v52, v54\nv_add_f32 v53, v53, v55\nv_add_f32 v48, v48, v52\nv_add_f32 v49, v49, v53")
        r("\n".join(ln_finalize(48, 49, 50)))
        r(f"""v_or_b32 v48, 1, v48
        s_and_b32 {T0}, {sSTQ}, 0x7ff
        s_lshl_b32 {T0}, {T0}, 2
        s_add_u32 {T0}, {T0}, {LG + l*16384 + h*8192}
        s_mov_b32 exec_hi, 0""")
        r.vmem(f"buffer_store_dwordx2 v[48:49], {vLGA}, {sWS}, {T0} offen sc1")
        r("s_mov_b64 exec, -1")
        r.end_w0()
        if h == 0:
            for i in wdrest: wd_load(r, i)
    r.w0_issue_g('p', l, 0); r.w0_check_g('p', 32 + l); r.barrier()
    ring = Ring(r, l); ring.next = 64
    while ring.next < nq_issued: ring.issue()
    r.wait_vm_all(); r.wait_lg_all()
    g.uid = r.uid + 1
    return r.l

QACC, QBUF, QRES, QRC, QP = 40, 104, 136, 72, 96
def g2(g, l, ring):
    opt = g.opt; st = g.st
    final = (l == 1); LK = 4; out = None; ok1 = [False]
    for h in range(2):
        base = 64 + 28*h
        def rd(b):
            Q = base + b; off = (Q % NQ)*4096
            while ring.next <= Q: ring.issue()
            g.wait_vm(ring.tok[Q])
            a = f"v{vHR+1} offset:{off-0xc000}" if off >= 0xc000 else f"v{vHR} offset:{off}"
            r = QBUF + 4*(b % 8)
            return g.ds(f"ds_read_b128 v[{r}:{r+3}], {a}")
        def allowed(n, b): return n < 120 and (n - NQ < 64 or n - NQ <= base + b) and (n < 92 or ok1[0])
        tk = {b: rd(b) for b in range(LK)}
        if h == 0: g.drain(None if opt.get('g2_drain', 1) else ('g1', 1, 0))
        for b in range(28):
            if b + LK < 28: tk[b+LK] = rd(b + LK)
            g.wait_lg(tk[b])
            r = QBUF + 4*(b % 8)
            for x in range(2):
                if h == 0 and b == 0 and x == 1: g.drain(('g1', 1, 1))
                c = "0" if b == 0 else f"v[{QACC+16*x}:{QACC+16*x+15}]"
                g(f"v_mfma_f32_32x32x16_bf16 v[{QACC+16*x}:{QACC+16*x+15}], {WDR(b, x)}, v[{r}:{r+3}], {c}")
                if ring.prepped: ring.issue()
                elif allowed(ring.next, b) and x == 0: ring.prep()
                g.fill(4)
            if b == 12:
                def pre():
                    for i in range(8): g(f"v_mov_b32 v{QRES+i}, 0"); yield
                    for i in range(8):
                        g(f"s_add_u32 {T0}, {sG2X}, {XT[2*l+1] + h*2048 + ((i&3) + 8*(i>>2))*4096}")
                        g.vmem(f"buffer_load_short_d16_hi v{QRES+i}, {vRES}, {sWS}, {T0} offen sc1"); yield; yield; yield
                    g(f"s_add_u32 {T0}, {sG2S}, {LG + l*16384 + h*8192}")
                    st['res'] = g.vmem(f"buffer_load_dword v148, {vLGA}, {sWS}, {T0} offen offset:4 sc1"); yield
                    if final and h == 0:
                        for x in final_addr().split('\n'): g(x); yield
                    g(f"v_add_u32 v149, {sGW}, {vL16}"); yield
                    for s in range(3): g(f"v_add_u32 v{150+s}, s{sGR+s}, {vL16}"); yield
                assert not g.fq
                g.fq.append([pre(), 0, 'pre'])
            if h == 0 and b == opt.get('g2_arr', 8):
                assert not g.fq
                g.wait_vm(st['hs']); g_arrive(g, l, 1); g.stamp(f'g2{l}arrG')
            if h == 0 and b == opt.get('g2_pg', 23): g.w0_issue_g('pg1', l, 1)
            if h == 1 and not final and b == opt.get('g2_arrx', 6):
                g.wait_vm(out); g.barrier(); g.arrive(SET_X(0)); g.stamp('arrX0')
            if h == 1 and not final and b == opt.get('g2_px', 23): g.w0_issue('px0', SET_X(0))
        g.drain()
        if ring.prepped: ring.issue()
        g.stamp(f'g2{l}{h}m')
        for s in range(3):
            a = QACC + 8*(s + 1)
            g.ds(f"ds_write_b128 v149, v[{a}:{a+3}] offset:{s*2048}"); g.ds(f"ds_write_b128 v149, v[{a+4}:{a+7}] offset:{s*2048+1024}")
        g.wait_vm(st['res'])
        g("v_mul_f32 v148, v148, v148")
        if h == 0: g.w0_check_g('pg1', 40 + l)
        if h == 1 and not final: g.w0_check('px0', 11)
        g.wait_lg_all(); g.barrier()
        g.stamp(f'g2{l}{h}b')
        ok1[0] = True
        def dma(n=1):
            for _ in range(n):
                if h == 0 and ring.next < 92 + opt.get('g2_pre', 16): ring.issue()
        tr = []
        for s in range(3):
            for i in range(2): t = g.ds(f"ds_read_b128 v[{QRC+8*s+4*i}:{QRC+8*s+4*i+3}], v{150+s} offset:{i*1024}")
            tr.append(t)
        if h == 1 and not final: st['t0'] = conv_loads(g, 1, 0, R0)
        dma(3)
        g.wait_lg(tr[0])
        for k in range(0, 8, 2): g(f"v_pk_add_f32 v[{QACC+k}:{QACC+k+1}], v[{QACC+k}:{QACC+k+1}], v[{QRC+k}:{QRC+k+1}]")
        g.wait_lg(tr[2])
        for k in range(0, 8, 2): g(f"v_pk_add_f32 v[{QRC+8+k}:{QRC+9+k}], v[{QRC+8+k}:{QRC+9+k}], v[{QRC+16+k}:{QRC+17+k}]")
        dma(1)
        for k in range(0, 8, 2): g(f"v_pk_add_f32 v[{QACC+k}:{QACC+k+1}], v[{QACC+k}:{QACC+k+1}], v[{QRC+8+k}:{QRC+9+k}]")
        dma(1)
        for k in range(8): g(f"v_fmac_f32 v{QRES+k}, v{QACC+k}, v148")
        dma(1)
        for k in range(4): g(f"v_cvt_pk_bf16_f32 v{QP+k}, v{QRES+2*k}, v{QRES+2*k+1}")
        if not final:
            for i in range(8):
                g.ds(f"ds_write_b16{'_d16_hi' if i&1 else ''} {vTW}, v{QP+(i>>1)} offset:{G2T + ((i&3) + 8*(i>>2))*64}")
            g(f"s_mov_b32 {T2}, 0x3f803f80")
            for x in dots(QP, 154, 155): g(x)
            g(f"s_add_u32 {T0}, {sG2S}, {STS[1] + h*8192}")
            g("v_permlane32_swap_b32 v154, v155\nv_add_f32 v154, v154, v155")
            g.wait_lg_all(); g.barrier()
            g.ds(f"ds_read_b128 v[100:103], {vT16} offset:{G2T}")
            g.vmem(f"buffer_atomic_add_f32 v154, {vSTA}, {sWS}, {T0} offen")
            g(f"s_add_u32 {T0}, {sG2T}, {XT[2] + h*2048}")
            g.wait_lg_all()
            out = g.vmem(f"buffer_store_dwordx4 v[100:103], {vTS}, {sWS}, {T0} offen sc1")
        else:
            for k in range(2): g.ds(f"ds_write_b64 {vOW}, v[{QP+2*k}:{QP+2*k+1}] offset:{G2T + 16*k}")
            dma(2)
            g.wait_lg_all(); g.barrier()
            g.ds(f"ds_read_b128 v[100:103], {vOR} offset:{G2T}")
            g(f"s_add_u32 {T0}, {sOUTO}, {h*0x100000}")
            g.wait_lg_all()
            out = g.vmem(f"buffer_store_dwordx4 v[100:103], {vOS}, {sOUT}, {T0} offen sc1")
        dma(16)
        g.stamp(f'g2{l}{h}e')
    return out

def ffn(g, l, s1):
    ring = g.st['ring']
    Ls = g.lab('st'); Lj = g.lab('join')
    nrest = len(g.bgq); assert nrest <= 56 - g.opt.get('n_wd0', 16), "W1 loads must be issued in conv"
    wdrest = list(range(56 - nrest, 56))
    g(f"s_cmp_ge_u32 {sJ}, 28\ns_cbranch_scc1 {Ls}")
    g1_role(g, l, ring, s1)
    g.barrier()
    g(f"s_branch {Lj}\n{Ls}:")
    for x in stats_role(g, l, ring.next, wdrest): g.l.append(x)
    g(f"{Lj}:\ns_nop 7\ns_nop 1")
    return g2(g, l, ring)

def build(opt):
    g = G(opt)
    tk = prologue(g)
    prep(g, tk)
    stop = opt.get('stop')
    if opt.get('dumpk'):
        g.wait_lg_all(); g.barrier()
        for c in range(8): g.ds(f"ds_read_b128 v[{40+4*c}:{43+4*c}], {vT16} offset:{KC + c*4160}")
        g.wait_lg_all()
        for c in range(8):
            g(f"s_lshl_b32 {T0}, s2, 15\ns_add_u32 {T0}, {T0}, {0x2000000 + c*4096}")
            g.vmem(f"buffer_store_dwordx4 v[{40+4*c}:{43+4*c}], {vT16}, {sWS}, {T0} offen")
    pend = None
    if stop != 'prep':
        for l in range(2):
            s1 = conv(g, l, pend)
            if stop == f'c{l}': break
            out = ffn(g, l, s1)
            if stop == f'g2{l}': break
            pend = (out, SET_X(1))
    g("Lfin:")
    if opt.get('stamps'):
        g("s_waitcnt vmcnt(0)"); g.stamp('end')
        g(f"s_lshl_b32 {T0}, s2, 2\ns_add_u32 {T0}, {T0}, {sW}\ns_lshl_b32 {T0}, {T0}, 8\ns_add_u32 {T0}, {T0}, {STAMP}\nv_lshlrev_b32 v41, 2, {vL}")
        g(f"buffer_store_dword {vSTMP}, v41, {sWS}, {T0} offen")
    if opt.get('dbgst'):
        sel = [g.stampnames.index(x) for x in opt['dbgst'].split(',')]
        g(f"s_cmp_lg_u32 s2, {opt.get('dbgwg', 9)}\ns_cbranch_scc1 Lend\ns_cmp_lg_u32 {sW}, 0\ns_cbranch_scc1 Lend\ns_mov_b64 exec, 1")
        g(f"v_readlane_b32 s84, {vSTMP}, 63\nv_mov_b32 v41, 0")
        for i, k in enumerate(sel):
            o = [8, 12, 20, 24, 28, 32, 36, 40, 44, 48, 52, 56, 60][i]
            g(f"v_readlane_b32 s85, {vSTMP}, {k}\ns_nop 3\ns_sub_u32 s85, s85, s84\nv_mov_b32 v40, s85\nbuffer_store_dword v40, v41, {sDBG}, 0 offen offset:{o}")
    g("Lend:")
    body = g.text()
    hdr = open('cdna_kernels/' + KN[:-7] + '.s.ref').read().split('; Override')[0]
    s = hdr + f"; @launch grid=(256,1,1) block=(256,1,1) lds={LDS_BYTES}\n"
    s += '.amdgcn_target "amdgcn-amd-amdhsa--gfx950"\n.text\n'
    s += f".globl {KN}\n.p2align 8\n.type {KN},@function\n{KN}:\n{body}s_endpgm\n"
    s += '.section .rodata,"a"\n.p2align 6\n' + kernel_desc(KN, 512, 102, 256)
    return s, g

if __name__ == "__main__":
    opt = {}
    out = sys.argv[1]
    for a in sys.argv[2:]:
        k, v = a.split('=')
        opt[k] = int(v) if v.lstrip('-').isdigit() else v
    s, g = build(opt)
    open(out, 'w').write(s)
    print("lines", len(g.l), "nops added", g.nops, "stamps", g.stampnames)
```

```python
from asmlib import *
import gen2
from emit import fix_hazards, sched
def mk(name, S):
    a = Asm()
    a("""s_load_dwordx2 s[6:7], s[0:1], 96
s_cmp_ge_u32 s2, 256
s_cbranch_scc1 Lb_end
s_waitcnt lgkmcnt(0)
s_mov_b32 s12, s6
s_mov_b32 s13, s7
s_mov_b32 s14, 256
s_mov_b32 s15, 0x20000
v_and_b32 v1, 63, v0
s_mov_b32 s55, 0
s_mov_b32 s30, 0
s_mov_b32 s19, 0
v_mov_b32 v2, 0
Lrep:
v_mov_b32 v60, 0x3f00
v_mov_b32 v61, 0x3e00
v_mov_b32 v62, 0x3c00
v_mov_b32 v63, 0x3c10
v_mov_b32 v64, 0xc080
s_barrier
s_memtime s[22:23]
s_waitcnt lgkmcnt(0)""")
    out, n = fix_hazards(S)
    for x in out: a(x)
    a(f"""s_waitcnt lgkmcnt(0)
s_memtime s[26:27]
s_waitcnt lgkmcnt(0)
s_sub_u32 s26, s26, s22
s_mov_b32 m0, s19\ns_nop 0\nv_writelane_b32 v2, s26, m0
s_add_u32 s19, s19, 1
s_cmp_lt_u32 s19, 4
s_cbranch_scc1 Lrep
s_cmp_lg_u32 s2, 0
s_cbranch_scc1 Lb_end
v_lshlrev_b32 v8, 2, v1
s_mov_b64 exec, 0xf
buffer_store_dword v2, v8, s[12:15], 0 offen
Lb_end:""")
    open(name, "w").write(make_file([("b_kernel",256,256,161280)], [("b_kernel", a.text(), 512, 102, 256)]))
    print(name, len(S), n)
for lat in (1, 2, 4, 6):
    s, g = gen2.build({'klat': lat, 'stop': 'prep'})
    mk(f"km_lat{lat}.s", g.kblock)
S = g.kblock
s, g = gen2.build({'klat': 4, 'stop': 'prep'}); S = g.kblock
mk("km_nowr.s", [x for x in S if not x.startswith("ds_")])
mk("km_nopk.s", [x for x in S if not x.startswith("v_pk")])
mk("km_onlypk.s", [x for x in S if x.startswith("v_pk")])
mk("km_onlywr.s", ["v_lshlrev_b32 v47, 2, v0"] + [x for x in S if x.startswith("ds_")])
```
